```python
import torch

def _softmax(x, axis=-1):
    return torch.softmax(x, dim=axis)
def _gelu(x):
    return torch.nn.functional.gelu(x, approximate="tanh")
def _silu(x):
    return torch.nn.functional.silu(x)
def _sigmoid(x):
    return torch.sigmoid(x)
def _layernorm(x, axis=-1, eps=1e-5):
    m = x.mean(dim=axis, keepdim=True)
    v = x.var(dim=axis, keepdim=True, unbiased=False)
    return (x - m) / torch.sqrt(v + eps)
def _scatter_add(tgt, idx, src, axis=0):
    return tgt.clone().index_add_(axis, idx, src)
def _segment_sum(src, seg, n):
    out = torch.zeros((n,) + src.shape[1:], dtype=src.dtype)
    return out.index_add_(0, seg, src)
def _pad(x, pw):
    flat = tuple(v for pair in reversed(pw) for v in pair)
    return torch.nn.functional.pad(x, flat)

kernel_name = 'standalone__low_rank_proj_linformer__sampling'

def setup_inputs():

    _w = (lambda a: (lambda t: t.to(torch.bfloat16) if t.is_floating_point() else t)(torch.as_tensor(a)))
    B, H, Sq, Skv, Dh, R = 16, 32, 8, 2048, 128, 16
    return {
        "q": _w((lambda *s: torch.randn(*s, dtype=torch.bfloat16) * 0.8)(B, H, Sq, Dh)),
        "k": _w((lambda *s: torch.randn(*s, dtype=torch.bfloat16) * 0.8)(B, H, Skv, Dh)),
        "v": _w((lambda *s: torch.randn(*s, dtype=torch.bfloat16) * 0.05)(B, H, Skv, Dh)),
        "e_proj": _w((lambda *s: torch.randn(*s, dtype=torch.bfloat16) * 0.8)(R, Skv) * (Skv ** -0.5)),
        "f_proj": _w((lambda *s: torch.randn(*s, dtype=torch.bfloat16) * 0.05)(R, Skv) * (Skv ** -0.5)),
    }

def reference(q, k, v, e_proj, f_proj):
    B, H, Sq, Dh = q.shape
    kp = torch.einsum("rn,bhnd->bhrd", e_proj, k)
    vp = torch.einsum("rn,bhnd->bhrd", f_proj, v)
    scores = torch.einsum("bhqd,bhrd->bhqr", q, kp) * (Dh ** -0.5)
    p = _softmax(scores, axis=-1)
    o = torch.einsum("bhqr,bhrd->bhqd", p, vp)
    return o
```

```python
import argparse

NAME = "standalone__low_rank_proj_linformer__sampling"

HEADER = """; Kernarg layout for this problem (64 bytes, ptrs only, base s[0:1]):
"""


def enc(w):
    return (w & 15) | ((w >> 4) << 22)


def gen(pat="x5789a46", mid=24, wmin=20, wmax=34, sh=4, M=8, NR=8, ctl=1, boost=0, bwin=36, stamp=0,
        flags="nt", sflags="", spin=0, probe=0, S=16, pubs="x258", w0=0):
    L = []
    e = L.append
    pos = [int(ch, 16) + 8 for ch in pat[1:]]
    assert sorted(pos) == list(range(12, 19))
    i2, cpos = pos[0], pos[1:]
    SLOT = 9216
    FLG = S * SLOT
    F_FULL, F_FREE, F_WIN, F_SC = FLG, FLG + 16, FLG + 24, FLG + 32
    SCX = FLG + 256
    LDS = SCX + 2048
    STR = 4352
    WSB = 1 << 20
    fl = f" {flags}" if flags else ""
    sfl = f" {sflags.replace('+', ' ')}" if sflags else ""
    pubat = [int(c) for c in pubs[1:]]
    if not w0:
        w0 = mid
    e(HEADER.rstrip())
    e(f"; @launch grid=(256,1,1) block=(256,1,1) lds={LDS}")
    e('.amdgcn_target "amdgcn-amd-amdhsa--gfx950"')
    e(".text")
    e(f".globl {NAME}_kernel")
    e(".p2align 8")
    e(f".type {NAME}_kernel,@function")
    e(f"{NAME}_kernel:")
    e("    s_cmp_ge_u32 s2, 256")
    e("    s_cbranch_scc1 L_done")
    e("    s_load_dwordx8 s[4:11], s[0:1], 0      ; q k v e")
    e("    s_load_dwordx4 s[12:15], s[0:1], 32    ; f out")
    if stamp or spin:
        e("    s_memrealtime s[60:61]")
    e("    v_readfirstlane_b32 s3, v0")
    e("    v_and_b32 v4, 15, v0")
    e("    v_bfe_u32 v5, v0, 4, 2")
    e("    s_cmp_lg_u32 s3, 0")
    e("    s_cbranch_scc1 L_notloader")
    e("    v_lshlrev_b32 v6, 1, v5")
    e("    v_xor_b32 v6, v6, v4")
    e("    v_lshlrev_b32 v1, 4, v6")
    e("    v_lshl_add_u32 v1, v5, 8, v1")
    e("    v_xor_b32 v2, 0x80, v1")
    e("    v_lshlrev_b32 v3, 12, v4")
    e("    v_and_b32 v6, 1, v5")
    e("    v_lshl_add_u32 v3, v6, 4, v3")
    e("    v_lshrrev_b32 v6, 1, v5")
    e(f"    v_lshl_add_u32 v3, v6, {i2-7}, v3")
    e("    s_lshl_b32 s28, s2, 20")
    e("    s_mov_b32 s18, 0x100000")
    e("    s_mov_b32 s19, 0x00020000")
    e("    s_mov_b32 s22, 65536")
    e("    s_mov_b32 s23, 0x00020000")
    e("    s_mov_b32 m0, 0")
    e(f"    s_mov_b32 s29, {1 << i2}")
    e("    s_waitcnt lgkmcnt(0)")
    e("    s_add_u32 s16, s6, s28")
    e("    s_addc_u32 s17, s7, 0")

    def dload(i, so):
        o = (i & 3) * 1024
        off = f" offset:{o}" if o else ""
        v = "v2" if i & 2 else "v1"
        e(f"    buffer_load_dwordx4 {v}, s[16:19], {so} offen{off}{fl} lds")

    def choff(c):
        return sum(((c >> b) & 1) << p for b, p in enumerate(cpos))

    for i in range(4):
        dload(i, "0")
    e("    s_mov_b32 m0, 4096")
    e("    s_mov_b32 s20, s10")
    for i in range(4, 8):
        dload(i, "s29")
    e("    s_mov_b32 m0, 8192")
    e("    s_mov_b32 s21, s11")
    e("    buffer_load_dwordx4 v3, s[20:23], 0 offen lds")
    e(f"    s_mov_b32 m0, {SLOT}")
    e(f"    s_mov_b32 s32, {choff(1)}")
    for i in range(4):
        dload(i, "s32")
    e(f"    s_mov_b32 m0, {SLOT + 4096}")
    e(f"    s_mov_b32 s29, {choff(1) + (1 << i2)}")
    for i in range(4, 8):
        dload(i, "s29")
    e(f"    s_mov_b32 m0, {SLOT + 8192}")
    e(f"    s_mov_b32 s33, {choff(1) >> 7}")
    e("    buffer_load_dwordx4 v3, s[20:23], s33 offen lds")
    if probe == 1:
        e("    s_memrealtime s[60:61]")
    e("    s_mov_b64 s[24:25], s[16:17]           ; K base")
    e("    s_add_u32 s26, s8, s28                 ; V base")
    e("    s_addc_u32 s27, s9, 0")
    e("    s_mov_b32 s31, 2")
    e(f"    s_mov_b32 s34, {2*SLOT}")
    e("    s_mov_b32 s35, 18")
    e(f"    s_mov_b32 s36, {enc(w0)}")
    e("    s_mov_b32 s37, 0xc0000f")
    e(f"    s_mov_b32 s32, {choff(2)}")
    e(f"    s_mov_b32 s33, {choff(2) >> 7}")
    e(f"    v_mov_b32 v7, {FLG}")
    e("    s_barrier")
    e("L_chunk:")
    e("    ds_read_b96 v[8:10], v7 offset:16")
    e("    s_mov_b32 m0, s34")
    e(f"    s_add_u32 s29, s32, {1 << i2}")

    def publish(issued_extra):
        e("    s_lshr_b32 s41, s40, 18")
        e("    s_or_b32 s41, s41, s40")
        e("    s_and_b32 s41, s41, 63")
        e("    s_sub_u32 s41, s35, s41")
        if issued_extra:
            e(f"    s_add_u32 s41, s41, {issued_extra}")
        e("    v_mov_b32 v11, s41")
        e("    ds_write_b32 v7, v11")

    for i in range(8):
        if i == 4:
            e("    s_add_u32 m0, m0, 4096")
        e(f"L_p{i}:")
        e("    s_getreg_b32 s40, hwreg(HW_REG_IB_STS)")
        e("    s_and_b32 s40, s40, s37")
        e("    s_cmp_ge_u32 s40, s36")
        e(f"    s_cbranch_scc1 L_p{i}")
        dload(i, "s32" if i < 4 else "s29")
        if i == 7:
            e("    s_add_u32 m0, m0, 4096")
            e("    s_add_u32 s31, s31, 1")
            e("    buffer_load_dwordx4 v3, s[20:23], s33 offen lds")
        if i in pubat or (i == 7 and 8 in pubat):
            publish(i)
    e("    s_add_u32 s35, s35, 9")
    e(f"    s_add_u32 s34, s34, {SLOT}")
    e(f"    s_cmp_eq_u32 s34, {SLOT*S}")
    e("    s_cselect_b32 s34, 0, s34")
    b = 0
    first = True
    while b < len(cpos):
        n = 1
        while b + n < len(cpos) and cpos[b + n] == cpos[b] + n:
            n += 1
        e(f"    s_bfe_u32 s28, s31, {(n<<16) | b}")
        if first:
            e(f"    s_lshl_b32 s32, s28, {cpos[b]}")
        else:
            e(f"    s_lshl_b32 s28, s28, {cpos[b]}")
            e("    s_or_b32 s32, s32, s28")
        first = False
        b += n
    e("    s_lshr_b32 s33, s32, 7")
    e(f"    s_bfe_u32 s28, s31, {(1<<16) | 7}")
    e("    s_lshl_b32 s28, s28, 19")
    e("    s_or_b32 s32, s32, s28")
    e("    s_bitcmp1_b32 s31, 6")
    e("    s_cselect_b64 s[16:17], s[26:27], s[24:25]")
    e("    s_cselect_b64 s[20:21], s[12:13], s[10:11]")
    e("    s_cmp_eq_u32 s31, 256")
    e("    s_cbranch_scc1 L_drain")
    e("L_chkfree:")
    e("    s_waitcnt lgkmcnt(0)")
    e("    v_min_u32 v8, v8, v9")
    e("    v_readfirstlane_b32 s36, v10")
    e("    v_readfirstlane_b32 s28, v8")
    e(f"    s_add_u32 s28, s28, {S}")
    e("    s_cmp_lt_u32 s31, s28")
    e("    s_cbranch_scc1 L_chunk")
    e("    s_getreg_b32 s40, hwreg(HW_REG_IB_STS)")
    e("    s_and_b32 s40, s40, s37")
    publish(0)
    e("    ds_read_b96 v[8:10], v7 offset:16")
    e("    s_branch L_chkfree")
    e("L_drain:")
    e("    s_getreg_b32 s40, hwreg(HW_REG_IB_STS)")
    e("    s_and_b32 s40, s40, s37")
    publish(0)
    e("    s_cmp_lg_u32 s40, 0")
    e("    s_cbranch_scc1 L_drain")
    e("    s_branch L_exit" if probe else "    s_endpgm")
    e("L_notloader:")
    e("    s_cmp_lg_u32 s3, 192")
    e("    s_cbranch_scc1 L_consumer")
    e("    s_load_dwordx2 s[50:51], s[0:1], 56    ; ws")
    e("    s_memrealtime s[40:41]")
    e(f"    v_mov_b32 v7, {FLG}")
    e("    v_mov_b32 v8, 0")
    e("    v_mov_b32 v9, 0")
    e(f"    v_mov_b32 v10, {enc(w0)}")
    e("    v_mov_b32 v11, 0")
    e("    ds_write_b32 v7, v8")
    e("    ds_write_b128 v7, v[8:11] offset:16")
    e("    ds_write_b64 v7, v[8:9] offset:32")
    e("    s_waitcnt lgkmcnt(0)")
    e("    s_barrier")
    if ctl:
        e(f"    v_and_b32 v9, {NR-1}, v0")
        e(f"    v_mul_u32_u24 v9, {STR}, v9")
        e(f"    v_add_u32 v9, {WSB}, v9")
        e(f"    s_mul_i32 s58, s2, {STR}")
        e(f"    s_add_u32 s58, s58, {WSB + STR*NR}")
        e(f"    s_mov_b32 s31, {9*M}")
        e("    s_mov_b32 s54, 0")
        e("    s_mov_b64 exec, 0xffff")
        e("L_epoch:")
        e("    ds_read_b32 v8, v7")
        e("    s_waitcnt lgkmcnt(0)")
        e("    v_readfirstlane_b32 s28, v8")
        e("    s_cmp_lt_u32 s28, s31")
        e("    s_cbranch_scc1 L_epoch")
        e("    s_memrealtime s[44:45]")
        e("    s_mov_b32 s55, s54")
        e(f"    global_load_dword v12, v9, s[50:51] sc0 sc1")
        e(f"    v_add_u32 v9, {STR*NR}, v9")
        e("    s_waitcnt lgkmcnt(0)")
        e("    s_sub_u32 s54, s44, s40")
        e(f"    s_cmp_ge_u32 s2, {NR}")
        e("    s_cbranch_scc1 L_norep")
        e("    v_mov_b32 v10, s44")
        e("    v_mov_b32 v11, s58")
        e("    s_mov_b64 exec, 1")
        e("    global_store_dword v11, v10, s[50:51] sc0 sc1")
        e("    s_mov_b64 exec, 0xffff")
        e(f"    s_add_u32 s58, s58, {STR*NR}")
        e("    s_waitcnt vmcnt(1)")
        e("    s_branch L_rep")
        e("L_norep:")
        e("    s_waitcnt vmcnt(0)")
        e("L_rep:")
        e(f"    s_cmp_eq_u32 s31, {9*M}")
        e("    s_cbranch_scc1 L_next")
        e("    v_subrev_u32 v12, s40, v12")
        e("    v_min_u32 v12, s54, v12")
        e("    s_nop 1")
        for d in (1, 2, 4, 8):
            if d < NR:
                e(f"    v_add_u32_dpp v12, v12, v12 row_ror:{d} row_mask:0xf bank_mask:0xf")
                e("    s_nop 1")
        e("    v_readfirstlane_b32 s38, v12")
        e(f"    s_lshr_b32 s38, s38, {NR.bit_length()-1}")
        e("    s_sub_u32 s38, s55, s38")
        e(f"    s_add_u32 s38, s38, {1 << (sh-1)}")
        e(f"    s_ashr_i32 s38, s38, {sh}")
        e(f"    s_add_u32 s38, s38, {mid}")
        e(f"    s_max_i32 s38, s38, {wmin}")
        e(f"    s_min_i32 s38, s38, {wmax}")
        e("    s_lshl_b32 s39, s38, 18")
        e("    s_or_b32 s38, s38, s39")
        e("    s_and_b32 s38, s38, 0xc0000f")
        e("    v_mov_b32 v8, s38")
        e("    ds_write_b32 v7, v8 offset:24")
        e("L_next:")
        e(f"    s_add_u32 s31, s31, {9*M}")
        e(f"    s_cmp_lt_u32 s31, {9*(256 - boost)}")
        e("    s_cbranch_scc1 L_epoch")
        if boost:
            e("L_boost:")
            e("    ds_read_b32 v8, v7")
            e("    s_waitcnt lgkmcnt(0)")
            e("    v_readfirstlane_b32 s28, v8")
            e(f"    s_cmp_lt_u32 s28, {9*(256 - boost)}")
            e("    s_cbranch_scc1 L_boost")
            e(f"    v_mov_b32 v8, {enc(bwin)}")
            e("    ds_write_b32 v7, v8 offset:24")
    e("    s_endpgm")
    e("L_consumer:")
    VA = 8
    VT = 14
    VE = 20
    VB = 24
    VACC = 40
    VQ = 56
    VP = 72
    VO = 76
    VX = 84
    NV = 100
    e("    s_lshr_b32 s3, s3, 7                   ; consumer 0/1")
    e("    v_and_b32 v0, 63, v0")
    e("    v_bfe_u32 v6, v0, 2, 2                 ; rr")
    e("    v_lshl_add_u32 v7, v5, 3, v6")
    e("    v_and_b32 v13, 1, v5")
    e("    v_lshl_add_u32 v6, v13, 2, v6")
    e("    s_lshl_b32 s28, s3, 2")
    e("    v_xor_b32 v6, s28, v6")
    e("    v_lshlrev_b32 v6, 5, v6")
    e("    v_lshl_add_u32 v6, v7, 8, v6")
    e("    v_and_b32 v13, 3, v0")
    e(f"    v_lshl_add_u32 v{VA}, v13, 3, v6")
    for j in range(1, 4):
        e(f"    v_xor_b32 v{VA+j}, {32*j}, v{VA}")
    e(f"    v_lshlrev_b32 v{VA+4}, 4, v0")
    e(f"    v_add_u32 v{VA+4}, 8192, v{VA+4}")
    e(f"    v_mov_b32 v7, {FLG}")
    e("    s_lshl_b32 s28, s3, 2")
    e(f"    v_add_u32 v3, s28, v7")
    e("    v_xor_b32 v2, 4, v3")
    e("    v_lshlrev_b32 v1, 8, v4")
    e("    v_lshl_add_u32 v1, v5, 3, v1")
    e("    s_lshl_b32 s28, s3, 7")
    e("    v_add_u32 v1, s28, v1")
    e("    s_lshl_b32 s28, s2, 12")
    e("    s_mov_b32 s18, 2048")
    e("    s_mov_b32 s19, 0x00020000")
    e("    s_mov_b32 s22, 2048")
    e("    s_mov_b32 s23, 0x00020000")
    e("    s_mov_b32 s31, 0                       ; chunk")
    e("    s_mov_b32 s32, 9")
    e("    s_mov_b32 s33, 0")
    e("    s_mov_b32 s34, 0")
    e("    s_waitcnt lgkmcnt(0)")
    e("    s_add_u32 s16, s4, s28")
    e("    s_addc_u32 s17, s5, 0")
    e("    s_add_u32 s20, s16, 2048")
    e("    s_addc_u32 s21, s17, 0")
    e("    s_barrier")
    for j in range(4):
        off = f" offset:{32*j}" if j else ""
        e(f"    buffer_load_dwordx2 v[{VQ+2*j}:{VQ+2*j+1}], v1, s[16:19], 0 offen{off}")
    for j in range(4):
        off = f" offset:{32*j}" if j else ""
        e(f"    buffer_load_dwordx2 v[{VQ+8+2*j}:{VQ+8+2*j+1}], v1, s[20:23], 0 offen{off}")
    e("    s_add_u32 s16, s14, s28")
    e("    s_addc_u32 s17, s15, 0")
    e("    s_add_u32 s20, s16, 2048")
    e("    s_addc_u32 s21, s17, 0")

    def seg(tag, isK):
        for i in range(16):
            e(f"    v_mov_b32 v{VACC+i}, 0")
        e(f"L_{tag}:")
        for j in range(5):
            e(f"    v_add_u32 v{VT+j}, s34, v{VA+j}")
        e("    s_add_u32 s31, s31, 1")
        e("    v_mov_b32 v13, s31")
        e("    s_cmp_ge_u32 s33, s32")
        e(f"    s_cbranch_scc1 L_{tag}_go")
        e(f"L_{tag}_poll:")
        e("    ds_read_b32 v6, v7")
        e("    s_waitcnt lgkmcnt(0)")
        e("    v_readfirstlane_b32 s33, v6")
        e("    s_cmp_lt_u32 s33, s32")
        e(f"    s_cbranch_scc1 L_{tag}_poll")
        e(f"L_{tag}_go:")
        e(f"    ds_read_b128 v[{VE}:{VE+3}], v{VT+4}")
        for j in range(4):
            e(f"    ds_read_b64_tr_b16 v[{VB+4*j}:{VB+4*j+1}], v{VT+j}")
            e(f"    ds_read_b64_tr_b16 v[{VB+4*j+2}:{VB+4*j+3}], v{VT+j} offset:1024")
        e("    ds_write_b32 v3, v13 offset:16")
        e("    s_add_u32 s32, s32, 9")
        e(f"    s_add_u32 s34, s34, {SLOT}")
        e(f"    s_cmp_eq_u32 s34, {SLOT*S}")
        e("    s_cselect_b32 s34, 0, s34")
        e("    s_and_b32 s28, s31, 63")
        for j in range(4):
            e(f"    s_waitcnt lgkmcnt({7-2*j})")
            a = VACC + 4 * j
            t = VB + 4 * j
            if isK:
                e(f"    v_mfma_f32_16x16x32_bf16 v[{a}:{a+3}], v[{t}:{t+3}], v[{VE}:{VE+3}], v[{a}:{a+3}]")
            else:
                e(f"    v_mfma_f32_16x16x32_bf16 v[{a}:{a+3}], v[{VE}:{VE+3}], v[{t}:{t+3}], v[{a}:{a+3}]")
        e(f"    s_cbranch_scc1 L_{tag}")

    e("L_head:")
    seg("k", True)
    T = VX
    e("    s_waitcnt vmcnt(0)")
    e("    s_nop 5")
    for j in range(4):
        e(f"    v_cvt_pk_bf16_f32 v{T+2*j}, v{VACC+4*j}, v{VACC+4*j+1}")
        e(f"    v_cvt_pk_bf16_f32 v{T+2*j+1}, v{VACC+4*j+2}, v{VACC+4*j+3}")
    e("    s_lshl_b32 s28, s3, 10")
    e(f"    s_add_u32 s28, s28, {SCX - 8192}")
    e(f"    v_mfma_f32_16x16x32_bf16 v[{T+8}:{T+11}], v[{T}:{T+3}], v[{VQ}:{VQ+3}], 0")
    e(f"    v_mfma_f32_16x16x32_bf16 v[{T+8}:{T+11}], v[{T+4}:{T+7}], v[{VQ+4}:{VQ+7}], v[{T+8}:{T+11}]")
    e(f"    v_add_u32 v14, s28, v{VA+4}")
    e("    v_xor_b32 v15, 16, v0")
    e("    v_xor_b32 v16, 32, v0")
    e("    v_lshlrev_b32 v15, 2, v15")
    e("    v_lshlrev_b32 v16, 2, v16")
    e("    s_xor_b32 s29, s3, 1")
    e("    s_lshl_b32 s29, s29, 10")
    e(f"    s_add_u32 s29, s29, {SCX - 8192}")
    e(f"    v_add_u32 v17, s29, v{VA+4}")
    e(f"    ds_write_b128 v14, v[{T+8}:{T+11}]")
    e("    ds_write_b32 v3, v13 offset:32")
    for i in range(8):
        e(f"    v_mov_b32 v{VQ+i}, v{VQ+8+i}")
    e("L_scpoll:")
    e("    ds_read_b32 v6, v2 offset:32")
    e("    s_waitcnt lgkmcnt(0)")
    e("    v_readfirstlane_b32 s28, v6")
    e("    s_cmp_lt_u32 s28, s31")
    e("    s_cbranch_scc1 L_scpoll")
    e(f"    ds_read_b128 v[{T}:{T+3}], v17")
    e("    s_waitcnt lgkmcnt(0)")
    for i in range(4):
        e(f"    v_add_f32 v{T+i}, v{T+i}, v{T+8+i}")

    def rnd():
        e(f"    v_cvt_pk_bf16_f32 v{T+4}, v{T}, v{T+1}")
        e(f"    v_cvt_pk_bf16_f32 v{T+5}, v{T+2}, v{T+3}")
        e(f"    v_lshlrev_b32 v{T}, 16, v{T+4}")
        e(f"    v_and_b32 v{T+1}, 0xffff0000, v{T+4}")
        e(f"    v_lshlrev_b32 v{T+2}, 16, v{T+5}")
        e(f"    v_and_b32 v{T+3}, 0xffff0000, v{T+5}")
    rnd()
    for i in range(4):
        e(f"    v_mul_f32 v{T+i}, 0x3db504f3, v{T+i}      ; 128^-0.5")
    rnd()
    e(f"    v_max_f32 v{T+4}, v{T}, v{T+1}")
    e(f"    v_max3_f32 v{T+4}, v{T+2}, v{T+3}, v{T+4}")
    e(f"    ds_bpermute_b32 v{T+5}, v15, v{T+4}")
    e("    s_waitcnt lgkmcnt(0)")
    e(f"    v_max_f32 v{T+4}, v{T+4}, v{T+5}")
    e(f"    ds_bpermute_b32 v{T+5}, v16, v{T+4}")
    e("    s_waitcnt lgkmcnt(0)")
    e(f"    v_max_f32 v{T+4}, v{T+4}, v{T+5}")
    for i in range(4):
        e(f"    v_sub_f32 v{T+i}, v{T+i}, v{T+4}")
    for i in range(4):
        e(f"    v_mul_f32 v{T+i}, 0x3fb8aa3b, v{T+i}      ; log2(e)")
    for i in range(4):
        e(f"    v_exp_f32 v{T+i}, v{T+i}")
    e("    s_nop 0")
    e(f"    v_add_f32 v{T+4}, v{T}, v{T+1}")
    e(f"    v_add_f32 v{T+5}, v{T+2}, v{T+3}")
    e(f"    v_add_f32 v{T+4}, v{T+4}, v{T+5}")
    e(f"    ds_bpermute_b32 v{T+5}, v15, v{T+4}")
    e("    s_waitcnt lgkmcnt(0)")
    e(f"    v_add_f32 v{T+4}, v{T+4}, v{T+5}")
    e(f"    ds_bpermute_b32 v{T+5}, v16, v{T+4}")
    e("    s_waitcnt lgkmcnt(0)")
    e(f"    v_add_f32 v{T+4}, v{T+4}, v{T+5}")
    e(f"    v_rcp_f32 v{T+4}, v{T+4}")
    e("    s_nop 0")
    for i in range(4):
        e(f"    v_mul_f32 v{T+i}, v{T+i}, v{T+4}")
    e(f"    v_cvt_pk_bf16_f32 v{VP}, v{T}, v{T+1}")
    e(f"    v_cvt_pk_bf16_f32 v{VP+1}, v{T+2}, v{T+3}")
    seg("v", False)
    e("    s_cmp_eq_u32 s31, 256")
    e("    s_nop 1")
    for j in range(4):
        e(f"    v_cvt_pk_bf16_f32 v{VB+2*j}, v{VACC+4*j}, v{VACC+4*j+1}")
        e(f"    v_cvt_pk_bf16_f32 v{VB+2*j+1}, v{VACC+4*j+2}, v{VACC+4*j+3}")
    for j in range(4):
        e(f"    v_mfma_f32_16x16x16_bf16 v[{T+4*j}:{T+4*j+3}], v[{VB+2*j}:{VB+2*j+1}], v[{VP}:{VP+1}], 0")
    e("    s_cbranch_scc1 L_final")
    e("    s_nop 7")
    for j in range(4):
        e(f"    v_cvt_pk_bf16_f32 v{VO+2*j}, v{T+4*j}, v{T+4*j+1}")
        e(f"    v_cvt_pk_bf16_f32 v{VO+2*j+1}, v{T+4*j+2}, v{T+4*j+3}")
    e("    s_branch L_head")
    e("L_final:")
    for j in range(4):
        off = f" offset:{32*j}" if j else ""
        e(f"    buffer_store_dwordx2 v[{VO+2*j}:{VO+2*j+1}], v1, s[16:19], 0 offen{off}{sfl}")
    for j in range(4):
        e(f"    v_cvt_pk_bf16_f32 v{VB+2*j}, v{T+4*j}, v{T+4*j+1}")
        e(f"    v_cvt_pk_bf16_f32 v{VB+2*j+1}, v{T+4*j+2}, v{T+4*j+3}")
        off = f" offset:{32*j}" if j else ""
        e(f"    buffer_store_dwordx2 v[{VB+2*j}:{VB+2*j+1}], v1, s[20:23], 0 offen{off}{sfl}")
    e("L_exit:")
    if spin:
        e("L_spin:")
        e("    s_memrealtime s[62:63]")
        e("    s_waitcnt lgkmcnt(0)")
        e("    s_sub_u32 s47, s62, s60")
        e(f"    s_cmp_lt_u32 s47, {spin}")
        e("    s_cbranch_scc1 L_spin")
    if stamp:
        e("    s_memrealtime s[62:63]")
        e("    s_load_dwordx2 s[50:51], s[0:1], 56    ; ws")
        e("    s_lshl_b32 s47, s2, 1")
        e("    s_add_u32 s46, s3, s47")
        e("    s_lshl_b32 s46, s46, 4")
        e("    s_waitcnt vmcnt(0) lgkmcnt(0)")
        e("    s_getreg_b32 s61, hwreg(HW_REG_XCC_ID)")
        e("    v_mov_b32 v12, s60")
        e("    v_mov_b32 v13, s61")
        e("    v_mov_b32 v14, s62")
        e("    v_mov_b32 v15, 0")
        e("    v_mov_b32 v16, s46")
        e("    global_store_dwordx4 v16, v[12:15], s[50:51]")
    e("L_done:")
    e("    s_endpgm")
    e('.section .rodata,"a"')
    e(".p2align 6")
    e(f".amdhsa_kernel {NAME}_kernel")
    e(f"  .amdhsa_next_free_vgpr {NV}")
    e("  .amdhsa_next_free_sgpr 64")
    e(f"  .amdhsa_accum_offset {(NV+3)//4*4}")
    e("  .amdhsa_group_segment_fixed_size 0")
    e("  .amdhsa_kernarg_size 64")
    e("  .amdhsa_user_sgpr_count 2")
    e("  .amdhsa_user_sgpr_kernarg_segment_ptr 1")
    e("  .amdhsa_system_sgpr_workgroup_id_x 1")
    e("  .amdhsa_float_denorm_mode_32 3")
    e(".end_amdhsa_kernel")
    return "\n".join(L) + "\n"


if __name__ == "__main__":
    import sys
    kw = {}
    out = "/dev/stdout"
    for a in sys.argv[1:]:
        k, v = a.split("=")
        if k == "o":
            out = v
            continue
        try:
            v = int(v)
        except ValueError:
            pass
        kw[k] = v
    open(out, "w").write(gen(**kw))
```

```python
import argparse

NAME = "standalone__low_rank_proj_linformer__sampling"

HEADER = """; Kernarg layout for this problem (64 bytes, ptrs only, base s[0:1]):
"""


def enc(w):
    return (w & 15) | ((w >> 4) << 22)


def gen(pat="x5789a46", mid=24, wmin=20, wmax=36, sh=4, M=8, NR=8, ctl=1, stamp=0,
        flags="nt", sflags="", spin=0, probe=0, S=16, w0=0, we=0, ne=0, pf=1, vo=0):
    L = []
    e = L.append
    pos = [int(ch, 16) + 8 for ch in pat[1:]]
    assert sorted(pos) == list(range(12, 19))
    i2, cpos = pos[0], pos[1:]
    SLOT = 9216
    FLG = S * SLOT
    F_FULL, F_FREE, F_WIN, F_SC = FLG, FLG + 16, FLG + 24, FLG + 32
    SCX = FLG + 256
    LDS = SCX + 2048
    STR = 4352
    WSB = 1 << 20
    fl = f" {flags}" if flags else ""
    sfl = f" {sflags.replace('+', ' ')}" if sflags else ""
    U = 4
    if not w0:
        w0 = mid
    e(HEADER.rstrip())
    e(f"; @launch grid=(256,1,1) block=(256,1,1) lds={LDS}")
    e('.amdgcn_target "amdgcn-amd-amdhsa--gfx950"')
    e(".text")
    e(f".globl {NAME}_kernel")
    e(".p2align 8")
    e(f".type {NAME}_kernel,@function")
    e(f"{NAME}_kernel:")
    e("    s_cmp_ge_u32 s2, 256")
    e("    s_cbranch_scc1 L_done")
    e("    v_readfirstlane_b32 s3, v0")
    e("    v_and_b32 v4, 15, v0")
    e("    v_bfe_u32 v5, v0, 4, 2")
    e(f"    v_mov_b32 v7, {FLG}")
    e("    s_cmp_lg_u32 s3, 0")
    e("    s_cbranch_scc1 L_notloader")
    e("    s_load_dwordx8 s[8:15], s[0:1], 8      ; k v e f")
    if probe or (spin and probe):
        e("    s_memrealtime s[60:61]")
    VD = 16
    VF = 32
    e("    v_lshlrev_b32 v6, 1, v5")
    e("    v_xor_b32 v6, v6, v4")
    e(f"    v_lshlrev_b32 v{VD}, 4, v6")
    e(f"    v_lshl_add_u32 v{VD}, v5, 8, v{VD}")
    e(f"    v_xor_b32 v{VD+1}, 0x80, v{VD}")
    for n in range(1, 8):
        o = ((n & 1) << i2) + (((n >> 1) & 1) << cpos[0]) + ((n >> 2) << cpos[1])
        e(f"    v_add_u32 v{VD+2*n}, {o}, v{VD}")
        e(f"    v_add_u32 v{VD+2*n+1}, {o}, v{VD+1}")
    e(f"    v_lshlrev_b32 v{VF}, 12, v4")
    e("    v_and_b32 v6, 1, v5")
    e(f"    v_lshl_add_u32 v{VF}, v6, 4, v{VF}")
    e("    v_lshrrev_b32 v6, 1, v5")
    e(f"    v_lshl_add_u32 v{VF}, v6, {i2-7}, v{VF}")
    for n in range(1, 4):
        o = (((n & 1) << cpos[0]) + ((n >> 1) << cpos[1])) >> 7
        e(f"    v_add_u32 v{VF+n}, {o}, v{VF}")
    e("    s_lshl_b32 s28, s2, 20")
    e("    s_mov_b32 s18, 0x100000")
    e("    s_mov_b32 s19, 0x00020000")
    e("    s_mov_b32 s22, 65536")
    e("    s_mov_b32 s23, 0x00020000")
    e("    s_mov_b32 s31, 0")
    e("    s_mov_b32 s32, 0")
    e("    s_mov_b32 s33, 0")
    e("    s_mov_b32 m0, 0")
    e("    v_mov_b32 v12, 0")
    e(f"    s_mov_b32 s36, {enc(w0)}")
    e("    s_mov_b32 s37, 0xc0000f")
    e("    s_barrier")
    e("    s_waitcnt lgkmcnt(0)")
    e("    s_add_u32 s16, s8, s28")
    e("    s_addc_u32 s17, s9, 0")
    e("    s_mov_b64 s[20:21], s[12:13]")
    e("L_body:")
    pubd = 0
    for n in range(8 * U):
        issued = n + n // 8
        e(f"L_p{n}:")
        e("    s_getreg_b32 s40, hwreg(HW_REG_IB_STS)")
        e("    s_and_b32 s40, s40, s37")
        e("    s_cmp_ge_u32 s40, s36")
        e(f"    s_cbranch_scc1 L_p{n}")
        o = (n & 3) * 1024
        off = f" offset:{o}" if o else ""
        v = VD + 2 * (n >> 2) + ((n >> 1) & 1)
        e(f"    buffer_load_dwordx4 v{v}, s[16:19], s32 offen{off}{fl} lds")
        if n & 3 == 3:
            e("    s_add_u32 m0, m0, 4096")
            e(f"    v_add_u32 v12, {(issued - pubd) << 4}, v12")
            pubd = issued
            if n & 7 == 7:
                e(f"    buffer_load_dwordx4 v{VF + n//8}, s[20:23], s33 offen lds")
                e("    s_add_u32 m0, m0, 1024")
            e("    v_add_u32 v11, s40, v12")
            e("    ds_write_b32 v7, v11")
        if n == 8 * U - 5:
            e("    ds_read_b96 v[8:10], v7 offset:16")
        if probe == 1 and n == 15:
            e("    s_cmp_lg_u32 s31, 0")
            e("    s_cbranch_scc1 L_nopr")
            e("    s_memrealtime s[60:61]")
            e("L_nopr:")
    e(f"    v_add_u32 v12, {(9*U - pubd) << 4}, v12")
    e(f"    s_add_u32 s31, s31, {U}")
    e(f"    s_cmp_eq_u32 m0, {SLOT*S}")
    e("    s_cselect_b32 m0, 0, m0")
    b_ = 2
    first = True
    while b_ < len(cpos):
        n = 1
        while b_ + n < len(cpos) and cpos[b_ + n] == cpos[b_] + n:
            n += 1
        e(f"    s_bfe_u32 s29, s31, {(n<<16) | b_}")
        if first:
            e(f"    s_lshl_b32 s32, s29, {cpos[b_]}")
        else:
            e(f"    s_lshl_b32 s29, s29, {cpos[b_]}")
            e("    s_or_b32 s32, s32, s29")
        first = False
        b_ += n
    e("    s_lshr_b32 s33, s32, 7")
    e(f"    s_bfe_u32 s29, s31, {(1<<16) | 7}")
    e("    s_lshl_b32 s29, s29, 19")
    e("    s_or_b32 s32, s32, s29")
    e("    s_bitcmp1_b32 s31, 6")
    e("    s_cselect_b64 s[16:17], s[10:11], s[8:9]")
    e("    s_cselect_b64 s[20:21], s[14:15], s[12:13]")
    e("    s_add_u32 s16, s16, s28")
    e("    s_addc_u32 s17, s17, 0")
    e("    s_cmp_eq_u32 s31, 256")
    e("    s_cbranch_scc1 L_drain")
    e("L_chkfree:")
    e("    s_waitcnt lgkmcnt(0)")
    e("    v_min_u32 v8, v8, v9")
    e("    v_readfirstlane_b32 s36, v10")
    e("    v_readfirstlane_b32 s29, v8")
    if ne:
        e(f"    s_cmp_ge_u32 s31, {256 - ne}")
        e(f"    s_cselect_b32 s36, {enc(we)}, s36")
    e(f"    s_add_u32 s29, s29, {S - U}")
    e("    s_cmp_le_u32 s31, s29")
    e("    s_cbranch_scc1 L_body")
    e("    s_getreg_b32 s40, hwreg(HW_REG_IB_STS)")
    e("    s_and_b32 s40, s40, s37")
    e("    v_add_u32 v11, s40, v12")
    e("    ds_write_b32 v7, v11")
    e("    ds_read_b96 v[8:10], v7 offset:16")
    e("    s_branch L_chkfree")
    e("L_drain:")
    e("    s_getreg_b32 s40, hwreg(HW_REG_IB_STS)")
    e("    s_and_b32 s40, s40, s37")
    e("    v_add_u32 v11, s40, v12")
    e("    ds_write_b32 v7, v11")
    e("    s_cbranch_scc1 L_drain")
    e("    s_branch L_exit" if probe else "    s_endpgm")
    e("L_notloader:")
    e("    s_cmp_lg_u32 s3, 192")
    e("    s_cbranch_scc1 L_consumer")
    e("    s_load_dwordx4 s[12:15], s[0:1], 24    ; e f")
    e("    s_load_dwordx2 s[50:51], s[0:1], 56    ; ws")
    e("    s_memrealtime s[40:41]")
    e("    v_and_b32 v13, 31, v0")
    e("    v_lshlrev_b32 v13, 11, v13")
    e("    s_lshr_b32 s28, s2, 3")
    e("    s_and_b32 s29, s28, 15")
    e("    s_lshl_b32 s29, s29, 7")
    e("    v_add_u32 v13, s29, v13")
    e("    s_barrier")
    e("    s_waitcnt lgkmcnt(0)")
    if pf:
        e("    s_bitcmp1_b32 s28, 4")
        e("    s_cselect_b64 s[20:21], s[14:15], s[12:13]")
        e("    global_load_dword v14, v13, s[20:21]")

    def decode(d):
        e(f"    s_lshr_b32 s29, s{d}, 18")
        e(f"    s_and_b32 s30, s{d}, 15")
        e("    s_or_b32 s29, s29, s30")
        e(f"    s_bfe_u32 s{d}, s{d}, 0xe0004")
        e(f"    s_sub_u32 s{d}, s{d}, s29")
    if ctl:
        e(f"    v_and_b32 v9, {NR-1}, v0")
        e(f"    v_mul_u32_u24 v9, {STR}, v9")
        e(f"    v_add_u32 v9, {WSB}, v9")
        e(f"    s_mul_i32 s58, s2, {STR}")
        e(f"    s_add_u32 s58, s58, {WSB + STR*NR}")
        e(f"    s_mov_b32 s31, {9*M}")
        e("    s_mov_b32 s54, 0")
        e("    s_mov_b64 exec, 0xffff")
        e("L_epoch:")
        e("    ds_read_b32 v8, v7")
        e("    s_waitcnt lgkmcnt(0)")
        e("    v_readfirstlane_b32 s28, v8")
        decode(28)
        e("    s_cmp_lt_u32 s28, s31")
        e("    s_cbranch_scc1 L_epoch")
        e("    s_memrealtime s[44:45]")
        e("    s_mov_b32 s55, s54")
        e(f"    global_load_dword v12, v9, s[50:51] sc0 sc1")
        e(f"    v_add_u32 v9, {STR*NR}, v9")
        e("    s_waitcnt lgkmcnt(0)")
        e("    s_sub_u32 s54, s44, s40")
        e(f"    s_cmp_ge_u32 s2, {NR}")
        e("    s_cbranch_scc1 L_norep")
        e("    v_mov_b32 v10, s44")
        e("    v_mov_b32 v11, s44")
        e("    v_lshl_add_u32 v15, v4, 3, s58")
        e("    global_store_dwordx2 v15, v[10:11], s[50:51] sc0 sc1")
        e(f"    s_add_u32 s58, s58, {STR*NR}")
        e("    s_waitcnt vmcnt(1)")
        e("    s_branch L_rep")
        e("L_norep:")
        e("    s_waitcnt vmcnt(0)")
        e("L_rep:")
        e(f"    s_cmp_eq_u32 s31, {9*M}")
        e("    s_cbranch_scc1 L_next")
        e("    v_subrev_u32 v12, s40, v12")
        if vo:
            e("    v_cmp_ge_u32 vcc, s54, v12")
            e("    v_mov_b32 v13, s55")
            e("    s_nop 0")
            e("    v_cndmask_b32 v12, v13, v12, vcc")
        else:
            e("    v_min_u32 v12, s54, v12")
        e("    s_nop 1")
        for d in (1, 2, 4, 8):
            if d < NR:
                e(f"    v_add_u32_dpp v12, v12, v12 row_ror:{d} row_mask:0xf bank_mask:0xf")
                e("    s_nop 1")
        e("    v_readfirstlane_b32 s38, v12")
        e(f"    s_lshr_b32 s38, s38, {NR.bit_length()-1}")
        e("    s_sub_u32 s38, s55, s38")
        e(f"    s_add_u32 s38, s38, {1 << (sh-1)}")
        e(f"    s_ashr_i32 s38, s38, {sh}")
        e(f"    s_add_u32 s38, s38, {mid}")
        e(f"    s_max_i32 s38, s38, {wmin}")
        e(f"    s_min_i32 s38, s38, {wmax}")
        e("    s_lshl_b32 s39, s38, 18")
        e("    s_or_b32 s38, s38, s39")
        e("    s_and_b32 s38, s38, 0xc0000f")
        e("    v_mov_b32 v8, s38")
        e("    ds_write_b32 v7, v8 offset:24")
        e("L_next:")
        e(f"    s_add_u32 s31, s31, {9*M}")
        e(f"    s_cmp_lt_u32 s31, {9*(256 - M)}")
        e("    s_cbranch_scc1 L_epoch")
    e("    s_endpgm")
    e("L_consumer:")
    VA = 8
    VT = 14
    VE = 20
    VB = 24
    VACC = 40
    VQ = 56
    VP = 72
    VO = 76
    VX = 84
    NV = 100
    e("    v_mov_b32 v8, 0")
    e("    v_mov_b32 v9, 0")
    e(f"    v_mov_b32 v10, {enc(mid)}")
    e("    v_mov_b32 v11, 0")
    e("    s_lshr_b32 s3, s3, 7                   ; consumer 0/1")
    e("    s_cbranch_scc1 L_noinit")
    e("    ds_write_b32 v7, v8")
    e("    ds_write_b128 v7, v[8:11] offset:16")
    e("    ds_write_b64 v7, v[8:9] offset:32")
    e("    s_waitcnt lgkmcnt(0)")
    e("L_noinit:")
    e("    s_barrier")
    e("    s_load_dwordx2 s[4:5], s[0:1], 0       ; q")
    e("    s_load_dwordx2 s[14:15], s[0:1], 40    ; out")
    if stamp or spin:
        e("    s_memrealtime s[60:61]")
    e("    v_and_b32 v0, 63, v0")
    e("    v_bfe_u32 v6, v0, 2, 2                 ; rr")
    e("    v_lshl_add_u32 v12, v5, 3, v6")
    e("    v_and_b32 v13, 1, v5")
    e("    v_lshl_add_u32 v6, v13, 2, v6")
    e("    s_lshl_b32 s28, s3, 2")
    e("    v_xor_b32 v6, s28, v6")
    e("    v_lshlrev_b32 v6, 5, v6")
    e("    v_lshl_add_u32 v6, v12, 8, v6")
    e("    v_and_b32 v13, 3, v0")
    e(f"    v_lshl_add_u32 v{VA}, v13, 3, v6")
    for j in range(1, 4):
        e(f"    v_xor_b32 v{VA+j}, {32*j}, v{VA}")
    e(f"    v_lshlrev_b32 v{VA+4}, 4, v0")
    e(f"    v_add_u32 v{VA+4}, 8192, v{VA+4}")
    e("    s_lshl_b32 s28, s3, 2")
    e(f"    v_add_u32 v3, s28, v7")
    e("    v_xor_b32 v2, 4, v3")
    e("    v_lshlrev_b32 v1, 8, v4")
    e("    v_lshl_add_u32 v1, v5, 3, v1")
    e("    s_lshl_b32 s28, s3, 7")
    e("    v_add_u32 v1, s28, v1")
    e("    s_lshl_b32 s28, s2, 12")
    e("    s_mov_b32 s18, 2048")
    e("    s_mov_b32 s19, 0x00020000")
    e("    s_mov_b32 s22, 2048")
    e("    s_mov_b32 s23, 0x00020000")
    e("    s_mov_b32 s31, 0                       ; chunk")
    e("    s_mov_b32 s32, 9")
    e("    s_mov_b32 s33, 0")
    e("    s_mov_b32 s34, 0")
    e("    s_waitcnt lgkmcnt(0)")
    e("    s_add_u32 s16, s4, s28")
    e("    s_addc_u32 s17, s5, 0")
    e("    s_add_u32 s20, s16, 2048")
    e("    s_addc_u32 s21, s17, 0")
    for j in range(4):
        off = f" offset:{32*j}" if j else ""
        e(f"    buffer_load_dwordx2 v[{VQ+2*j}:{VQ+2*j+1}], v1, s[16:19], 0 offen{off}")
    for j in range(4):
        off = f" offset:{32*j}" if j else ""
        e(f"    buffer_load_dwordx2 v[{VQ+8+2*j}:{VQ+8+2*j+1}], v1, s[20:23], 0 offen{off}")
    e("    s_add_u32 s16, s14, s28")
    e("    s_addc_u32 s17, s15, 0")
    e("    s_add_u32 s20, s16, 2048")
    e("    s_addc_u32 s21, s17, 0")

    def seg(tag, isK):
        for i in range(16):
            e(f"    v_mov_b32 v{VACC+i}, 0")
        e(f"L_{tag}:")
        for j in range(5):
            e(f"    v_add_u32 v{VT+j}, s34, v{VA+j}")
        e("    s_add_u32 s31, s31, 1")
        e("    v_mov_b32 v13, s31")
        e("    s_cmp_ge_u32 s33, s32")
        e(f"    s_cbranch_scc1 L_{tag}_go")
        e(f"L_{tag}_poll:")
        e("    ds_read_b32 v6, v7")
        e("    s_waitcnt lgkmcnt(0)")
        e("    v_readfirstlane_b32 s33, v6")
        decode(33)
        e("    s_cmp_lt_u32 s33, s32")
        e(f"    s_cbranch_scc1 L_{tag}_poll")
        e(f"L_{tag}_go:")
        e(f"    ds_read_b128 v[{VE}:{VE+3}], v{VT+4}")
        for j in range(4):
            e(f"    ds_read_b64_tr_b16 v[{VB+4*j}:{VB+4*j+1}], v{VT+j}")
            e(f"    ds_read_b64_tr_b16 v[{VB+4*j+2}:{VB+4*j+3}], v{VT+j} offset:1024")
        e("    ds_write_b32 v3, v13 offset:16")
        e("    s_add_u32 s32, s32, 9")
        e(f"    s_add_u32 s34, s34, {SLOT}")
        e(f"    s_cmp_eq_u32 s34, {SLOT*S}")
        e("    s_cselect_b32 s34, 0, s34")
        e("    s_and_b32 s28, s31, 63")
        for j in range(4):
            e(f"    s_waitcnt lgkmcnt({7-2*j})")
            a = VACC + 4 * j
            t = VB + 4 * j
            if isK:
                e(f"    v_mfma_f32_16x16x32_bf16 v[{a}:{a+3}], v[{t}:{t+3}], v[{VE}:{VE+3}], v[{a}:{a+3}]")
            else:
                e(f"    v_mfma_f32_16x16x32_bf16 v[{a}:{a+3}], v[{VE}:{VE+3}], v[{t}:{t+3}], v[{a}:{a+3}]")
        e(f"    s_cbranch_scc1 L_{tag}")

    e("L_head:")
    seg("k", True)
    T = VX
    e("    s_waitcnt vmcnt(0)")
    e("    s_nop 5")
    for j in range(4):
        e(f"    v_cvt_pk_bf16_f32 v{T+2*j}, v{VACC+4*j}, v{VACC+4*j+1}")
        e(f"    v_cvt_pk_bf16_f32 v{T+2*j+1}, v{VACC+4*j+2}, v{VACC+4*j+3}")
    e("    s_lshl_b32 s28, s3, 10")
    e(f"    s_add_u32 s28, s28, {SCX - 8192}")
    e(f"    v_mfma_f32_16x16x32_bf16 v[{T+8}:{T+11}], v[{T}:{T+3}], v[{VQ}:{VQ+3}], 0")
    e(f"    v_mfma_f32_16x16x32_bf16 v[{T+8}:{T+11}], v[{T+4}:{T+7}], v[{VQ+4}:{VQ+7}], v[{T+8}:{T+11}]")
    e(f"    v_add_u32 v14, s28, v{VA+4}")
    e("    v_xor_b32 v15, 16, v0")
    e("    v_xor_b32 v16, 32, v0")
    e("    v_lshlrev_b32 v15, 2, v15")
    e("    v_lshlrev_b32 v16, 2, v16")
    e("    s_xor_b32 s29, s3, 1")
    e("    s_lshl_b32 s29, s29, 10")
    e(f"    s_add_u32 s29, s29, {SCX - 8192}")
    e(f"    v_add_u32 v17, s29, v{VA+4}")
    e(f"    ds_write_b128 v14, v[{T+8}:{T+11}]")
    e("    ds_write_b32 v3, v13 offset:32")
    for i in range(8):
        e(f"    v_mov_b32 v{VQ+i}, v{VQ+8+i}")
    e("L_scpoll:")
    e("    ds_read_b32 v6, v2 offset:32")
    e("    s_waitcnt lgkmcnt(0)")
    e("    v_readfirstlane_b32 s28, v6")
    e("    s_cmp_lt_u32 s28, s31")
    e("    s_cbranch_scc1 L_scpoll")
    e(f"    ds_read_b128 v[{T}:{T+3}], v17")
    e("    s_waitcnt lgkmcnt(0)")
    for i in range(4):
        e(f"    v_add_f32 v{T+i}, v{T+i}, v{T+8+i}")

    def rnd():
        e(f"    v_cvt_pk_bf16_f32 v{T+4}, v{T}, v{T+1}")
        e(f"    v_cvt_pk_bf16_f32 v{T+5}, v{T+2}, v{T+3}")
        e(f"    v_lshlrev_b32 v{T}, 16, v{T+4}")
        e(f"    v_and_b32 v{T+1}, 0xffff0000, v{T+4}")
        e(f"    v_lshlrev_b32 v{T+2}, 16, v{T+5}")
        e(f"    v_and_b32 v{T+3}, 0xffff0000, v{T+5}")
    rnd()
    for i in range(4):
        e(f"    v_mul_f32 v{T+i}, 0x3db504f3, v{T+i}      ; 128^-0.5")
    rnd()
    e(f"    v_max_f32 v{T+4}, v{T}, v{T+1}")
    e(f"    v_max3_f32 v{T+4}, v{T+2}, v{T+3}, v{T+4}")
    e(f"    ds_bpermute_b32 v{T+5}, v15, v{T+4}")
    e("    s_waitcnt lgkmcnt(0)")
    e(f"    v_max_f32 v{T+4}, v{T+4}, v{T+5}")
    e(f"    ds_bpermute_b32 v{T+5}, v16, v{T+4}")
    e("    s_waitcnt lgkmcnt(0)")
    e(f"    v_max_f32 v{T+4}, v{T+4}, v{T+5}")
    for i in range(4):
        e(f"    v_sub_f32 v{T+i}, v{T+i}, v{T+4}")
    for i in range(4):
        e(f"    v_mul_f32 v{T+i}, 0x3fb8aa3b, v{T+i}      ; log2(e)")
    for i in range(4):
        e(f"    v_exp_f32 v{T+i}, v{T+i}")
    e("    s_nop 0")
    e(f"    v_add_f32 v{T+4}, v{T}, v{T+1}")
    e(f"    v_add_f32 v{T+5}, v{T+2}, v{T+3}")
    e(f"    v_add_f32 v{T+4}, v{T+4}, v{T+5}")
    e(f"    ds_bpermute_b32 v{T+5}, v15, v{T+4}")
    e("    s_waitcnt lgkmcnt(0)")
    e(f"    v_add_f32 v{T+4}, v{T+4}, v{T+5}")
    e(f"    ds_bpermute_b32 v{T+5}, v16, v{T+4}")
    e("    s_waitcnt lgkmcnt(0)")
    e(f"    v_add_f32 v{T+4}, v{T+4}, v{T+5}")
    e(f"    v_rcp_f32 v{T+4}, v{T+4}")
    e("    s_nop 0")
    for i in range(4):
        e(f"    v_mul_f32 v{T+i}, v{T+i}, v{T+4}")
    e(f"    v_cvt_pk_bf16_f32 v{VP}, v{T}, v{T+1}")
    e(f"    v_cvt_pk_bf16_f32 v{VP+1}, v{T+2}, v{T+3}")
    seg("v", False)
    e("    s_cmp_eq_u32 s31, 256")
    e("    s_nop 1")
    for j in range(4):
        e(f"    v_cvt_pk_bf16_f32 v{VB+2*j}, v{VACC+4*j}, v{VACC+4*j+1}")
        e(f"    v_cvt_pk_bf16_f32 v{VB+2*j+1}, v{VACC+4*j+2}, v{VACC+4*j+3}")
    for j in range(4):
        e(f"    v_mfma_f32_16x16x16_bf16 v[{T+4*j}:{T+4*j+3}], v[{VB+2*j}:{VB+2*j+1}], v[{VP}:{VP+1}], 0")
    e("    s_cbranch_scc1 L_final")
    e("    s_nop 7")
    for j in range(4):
        e(f"    v_cvt_pk_bf16_f32 v{VO+2*j}, v{T+4*j}, v{T+4*j+1}")
        e(f"    v_cvt_pk_bf16_f32 v{VO+2*j+1}, v{T+4*j+2}, v{T+4*j+3}")
    e("    s_branch L_head")
    e("L_final:")
    for j in range(4):
        off = f" offset:{32*j}" if j else ""
        e(f"    buffer_store_dwordx2 v[{VO+2*j}:{VO+2*j+1}], v1, s[16:19], 0 offen{off}{sfl}")
    for j in range(4):
        e(f"    v_cvt_pk_bf16_f32 v{VB+2*j}, v{T+4*j}, v{T+4*j+1}")
        e(f"    v_cvt_pk_bf16_f32 v{VB+2*j+1}, v{T+4*j+2}, v{T+4*j+3}")
        off = f" offset:{32*j}" if j else ""
        e(f"    buffer_store_dwordx2 v[{VB+2*j}:{VB+2*j+1}], v1, s[20:23], 0 offen{off}{sfl}")
    e("L_exit:")
    if spin:
        e("L_spin:")
        e("    s_memrealtime s[62:63]")
        e("    s_waitcnt lgkmcnt(0)")
        e("    s_sub_u32 s47, s62, s60")
        e(f"    s_cmp_lt_u32 s47, {spin}")
        e("    s_cbranch_scc1 L_spin")
    if stamp:
        e("    s_memrealtime s[62:63]")
        e("    s_load_dwordx2 s[50:51], s[0:1], 56    ; ws")
        e("    s_lshl_b32 s47, s2, 1")
        e("    s_add_u32 s46, s3, s47")
        e("    s_lshl_b32 s46, s46, 4")
        e("    s_waitcnt vmcnt(0) lgkmcnt(0)")
        e("    s_getreg_b32 s61, hwreg(HW_REG_XCC_ID)")
        e("    v_mov_b32 v12, s60")
        e("    v_mov_b32 v13, s61")
        e("    v_mov_b32 v14, s62")
        e("    v_mov_b32 v15, 0")
        e("    v_mov_b32 v16, s46")
        e("    global_store_dwordx4 v16, v[12:15], s[50:51]")
    e("L_done:")
    e("    s_endpgm")
    e('.section .rodata,"a"')
    e(".p2align 6")
    e(f".amdhsa_kernel {NAME}_kernel")
    e(f"  .amdhsa_next_free_vgpr {NV}")
    e("  .amdhsa_next_free_sgpr 64")
    e(f"  .amdhsa_accum_offset {(NV+3)//4*4}")
    e("  .amdhsa_group_segment_fixed_size 0")
    e("  .amdhsa_kernarg_size 64")
    e("  .amdhsa_user_sgpr_count 2")
    e("  .amdhsa_user_sgpr_kernarg_segment_ptr 1")
    e("  .amdhsa_system_sgpr_workgroup_id_x 1")
    e("  .amdhsa_float_denorm_mode_32 3")
    e(".end_amdhsa_kernel")
    return "\n".join(L) + "\n"


if __name__ == "__main__":
    import sys
    kw = {}
    out = "/dev/stdout"
    for a in sys.argv[1:]:
        k, v = a.split("=")
        if k == "o":
            out = v
            continue
        try:
            v = int(v)
        except ValueError:
            pass
        kw[k] = v
    open(out, "w").write(gen(**kw))
```

```python
import argparse

NAME = "standalone__low_rank_proj_linformer__sampling"

HEADER = """; Kernarg layout for this problem (64 bytes, ptrs only, base s[0:1]):
"""


def enc(w):
    return (w & 15) | ((w >> 4) << 22)


def gen(pat="x5789a46", mid=24, wmin=20, wmax=36, sh=4, M=8, NR=8, ctl=1, stamp=0,
        flags="nt", sflags="", spin=0, probe=0, S=16, w0=0, we=0, ne=0, pf=1, vo=0, gmin=0):
    L = []
    e = L.append
    pos = [int(ch, 16) + 8 for ch in pat[1:]]
    assert sorted(pos) == list(range(12, 19))
    i2, cpos = pos[0], pos[1:]
    SLOT = 9216
    FLG = S * SLOT
    F_FULL, F_FREE, F_WIN, F_SC = FLG, FLG + 16, FLG + 24, FLG + 32
    SCX = FLG + 256
    LDS = SCX + 2048
    STR = 4352
    WSB = 1 << 20
    fl = f" {flags}" if flags else ""
    sfl = f" {sflags.replace('+', ' ')}" if sflags else ""
    U = 4
    if not w0:
        w0 = mid
    e(HEADER.rstrip())
    e(f"; @launch grid=(256,1,1) block=(256,1,1) lds={LDS}")
    e('.amdgcn_target "amdgcn-amd-amdhsa--gfx950"')
    e(".text")
    e(f".globl {NAME}_kernel")
    e(".p2align 8")
    e(f".type {NAME}_kernel,@function")
    e(f"{NAME}_kernel:")
    e("    s_cmp_ge_u32 s2, 256")
    e("    s_cbranch_scc1 L_done")
    if spin or stamp:
        e("    s_memrealtime s[60:61]")
    e("    v_readfirstlane_b32 s3, v0")
    e("    v_and_b32 v4, 15, v0")
    e("    v_bfe_u32 v5, v0, 4, 2")
    e(f"    v_mov_b32 v7, {FLG}")
    e("    s_cmp_lg_u32 s3, 0")
    e("    s_cbranch_scc1 L_notloader")
    e("    s_load_dwordx8 s[8:15], s[0:1], 8      ; k v e f")
    VD = 16
    VF = 32
    e("    v_lshlrev_b32 v6, 1, v5")
    e("    v_xor_b32 v6, v6, v4")
    e(f"    v_lshlrev_b32 v{VD}, 4, v6")
    e(f"    v_lshl_add_u32 v{VD}, v5, 8, v{VD}")
    e(f"    v_xor_b32 v{VD+1}, 0x80, v{VD}")
    for n in range(1, 8):
        o = ((n & 1) << i2) + (((n >> 1) & 1) << cpos[0]) + ((n >> 2) << cpos[1])
        e(f"    v_add_u32 v{VD+2*n}, {o}, v{VD}")
        e(f"    v_add_u32 v{VD+2*n+1}, {o}, v{VD+1}")
    e(f"    v_lshlrev_b32 v{VF}, 12, v4")
    e("    v_and_b32 v6, 1, v5")
    e(f"    v_lshl_add_u32 v{VF}, v6, 4, v{VF}")
    e("    v_lshrrev_b32 v6, 1, v5")
    e(f"    v_lshl_add_u32 v{VF}, v6, {i2-7}, v{VF}")
    for n in range(1, 4):
        o = (((n & 1) << cpos[0]) + ((n >> 1) << cpos[1])) >> 7
        e(f"    v_add_u32 v{VF+n}, {o}, v{VF}")
    e("    s_lshl_b32 s28, s2, 20")
    e("    s_mov_b32 s18, 0x100000")
    e("    s_mov_b32 s19, 0x00020000")
    e("    s_mov_b32 s22, 65536")
    e("    s_mov_b32 s23, 0x00020000")
    e("    s_mov_b32 s31, 0")
    e("    s_mov_b32 s32, 0")
    e("    s_mov_b32 s33, 0")
    e("    s_mov_b32 m0, 0")
    e("    v_mov_b32 v12, 0")
    e(f"    s_mov_b32 s36, {enc(w0)}")
    e("    s_mov_b32 s37, 0xc0000f")
    if probe == 3:
        e("    s_waitcnt lgkmcnt(0)")
        e("    s_memrealtime s[60:61]")
    e("    s_barrier")
    e("    s_waitcnt lgkmcnt(0)")
    if probe == 2:
        e("    s_memrealtime s[60:61]")
    e("    s_add_u32 s16, s8, s28")
    e("    s_addc_u32 s17, s9, 0")
    e("    s_mov_b64 s[20:21], s[12:13]")
    e("L_body:")
    pubd = 0
    for n in range(8 * U):
        issued = n + n // 8
        e(f"L_p{n}:")
        e("    s_getreg_b32 s40, hwreg(HW_REG_IB_STS)")
        e("    s_and_b32 s40, s40, s37")
        e("    s_cmp_ge_u32 s40, s36")
        e(f"    s_cbranch_scc1 L_p{n}")
        o = (n & 3) * 1024
        off = f" offset:{o}" if o else ""
        v = VD + 2 * (n >> 2) + ((n >> 1) & 1)
        e(f"    buffer_load_dwordx4 v{v}, s[16:19], s32 offen{off}{fl} lds")
        if n & 3 == 3:
            e("    s_add_u32 m0, m0, 4096")
            e(f"    v_add_u32 v12, {(issued - pubd) << 4}, v12")
            pubd = issued
            if n & 7 == 7:
                e(f"    buffer_load_dwordx4 v{VF + n//8}, s[20:23], s33 offen lds")
                e("    s_add_u32 m0, m0, 1024")
            e("    v_add_u32 v11, s40, v12")
            e("    ds_write_b32 v7, v11")
        if n == 8 * U - 5:
            e("    ds_read_b96 v[8:10], v7 offset:16")
        if (probe == 1 and n == 15) or (probe >= 4 and n == 31):
            e(f"    s_cmp_lg_u32 s31, {0 if probe == 1 else probe - 4}")
            e("    s_cbranch_scc1 L_nopr")
            e("    s_memrealtime s[60:61]")
            e("L_nopr:")
    e(f"    v_add_u32 v12, {(9*U - pubd) << 4}, v12")
    e(f"    s_add_u32 s31, s31, {U}")
    e(f"    s_cmp_eq_u32 m0, {SLOT*S}")
    e("    s_cselect_b32 m0, 0, m0")
    b_ = 2
    first = True
    while b_ < len(cpos):
        n = 1
        while b_ + n < len(cpos) and cpos[b_ + n] == cpos[b_] + n:
            n += 1
        e(f"    s_bfe_u32 s29, s31, {(n<<16) | b_}")
        if first:
            e(f"    s_lshl_b32 s32, s29, {cpos[b_]}")
        else:
            e(f"    s_lshl_b32 s29, s29, {cpos[b_]}")
            e("    s_or_b32 s32, s32, s29")
        first = False
        b_ += n
    e("    s_lshr_b32 s33, s32, 7")
    e(f"    s_bfe_u32 s29, s31, {(1<<16) | 7}")
    e("    s_lshl_b32 s29, s29, 19")
    e("    s_or_b32 s32, s32, s29")
    e("    s_bitcmp1_b32 s31, 6")
    e("    s_cselect_b64 s[16:17], s[10:11], s[8:9]")
    e("    s_cselect_b64 s[20:21], s[14:15], s[12:13]")
    e("    s_add_u32 s16, s16, s28")
    e("    s_addc_u32 s17, s17, 0")
    e("    s_cmp_eq_u32 s31, 256")
    e("    s_cbranch_scc1 L_drain")
    e("L_chkfree:")
    e("    s_waitcnt lgkmcnt(0)")
    e("    v_min_u32 v8, v8, v9")
    e("    v_readfirstlane_b32 s36, v10")
    e("    v_readfirstlane_b32 s29, v8")
    if ne:
        e(f"    s_cmp_ge_u32 s31, {256 - ne}")
        e(f"    s_cselect_b32 s36, {enc(we)}, s36")
    e(f"    s_add_u32 s29, s29, {S - U}")
    e("    s_cmp_le_u32 s31, s29")
    e("    s_cbranch_scc1 L_body")
    e("    s_getreg_b32 s40, hwreg(HW_REG_IB_STS)")
    e("    s_and_b32 s40, s40, s37")
    e("    v_add_u32 v11, s40, v12")
    e("    ds_write_b32 v7, v11")
    e("    ds_read_b96 v[8:10], v7 offset:16")
    e("    s_branch L_chkfree")
    e("L_drain:")
    e("    s_getreg_b32 s40, hwreg(HW_REG_IB_STS)")
    e("    s_and_b32 s40, s40, s37")
    e("    v_add_u32 v11, s40, v12")
    e("    ds_write_b32 v7, v11")
    e("    s_cbranch_scc1 L_drain")
    e("    s_branch L_exit" if probe else "    s_endpgm")
    e("L_notloader:")
    e("    s_cmp_lg_u32 s3, 192")
    e("    s_cbranch_scc1 L_consumer")
    e("    s_load_dwordx4 s[12:15], s[0:1], 24    ; e f")
    e("    s_load_dwordx2 s[50:51], s[0:1], 56    ; ws")
    e("    s_memrealtime s[40:41]")
    e("    v_and_b32 v13, 31, v0")
    e("    v_lshlrev_b32 v13, 11, v13")
    e("    s_lshr_b32 s28, s2, 3")
    e("    s_and_b32 s29, s28, 15")
    e("    s_lshl_b32 s29, s29, 7")
    e("    v_add_u32 v13, s29, v13")
    e("    s_barrier")
    e("    s_waitcnt lgkmcnt(0)")
    if pf:
        e("    s_bitcmp1_b32 s28, 4")
        e("    s_cselect_b64 s[20:21], s[14:15], s[12:13]")
        e("    global_load_dword v14, v13, s[20:21]")

    def decode(d):
        e(f"    s_lshr_b32 s29, s{d}, 18")
        e(f"    s_and_b32 s30, s{d}, 15")
        e("    s_or_b32 s29, s29, s30")
        e(f"    s_bfe_u32 s{d}, s{d}, 0xe0004")
        e(f"    s_sub_u32 s{d}, s{d}, s29")
    if ctl:
        e(f"    v_and_b32 v9, {NR-1}, v0")
        e(f"    v_mul_u32_u24 v9, {STR}, v9")
        e(f"    v_add_u32 v9, {WSB}, v9")
        e(f"    s_mul_i32 s58, s2, {STR}")
        e(f"    s_add_u32 s58, s58, {WSB + STR*NR}")
        e(f"    s_mov_b32 s31, {9*M}")
        e("    s_mov_b32 s54, 0")
        e("    s_mov_b64 exec, 0xffff")
        e("L_epoch:")
        e("    ds_read_b32 v8, v7")
        e("    s_waitcnt lgkmcnt(0)")
        e("    v_readfirstlane_b32 s28, v8")
        decode(28)
        e("    s_cmp_lt_u32 s28, s31")
        e("    s_cbranch_scc1 L_epoch")
        e("    s_memrealtime s[44:45]")
        e("    s_mov_b32 s55, s54")
        e(f"    global_load_dword v12, v9, s[50:51] sc0 sc1")
        e(f"    v_add_u32 v9, {STR*NR}, v9")
        e("    s_waitcnt lgkmcnt(0)")
        e("    s_sub_u32 s54, s44, s40")
        e(f"    s_cmp_ge_u32 s2, {NR}")
        e("    s_cbranch_scc1 L_norep")
        e("    v_mov_b32 v10, s44")
        e("    v_mov_b32 v11, s44")
        e("    v_lshl_add_u32 v15, v4, 3, s58")
        e("    global_store_dwordx2 v15, v[10:11], s[50:51] sc0 sc1")
        e(f"    s_add_u32 s58, s58, {STR*NR}")
        e("    s_waitcnt vmcnt(1)")
        e("    s_branch L_rep")
        e("L_norep:")
        e("    s_waitcnt vmcnt(0)")
        e("L_rep:")
        e(f"    s_cmp_eq_u32 s31, {9*M}")
        e("    s_cbranch_scc1 L_next")
        e("    v_subrev_u32 v12, s40, v12")
        if vo:
            e("    v_cmp_ge_u32 vcc, s54, v12")
            e("    v_mov_b32 v13, s55")
            e("    s_nop 0")
            e("    v_cndmask_b32 v12, v13, v12, vcc")
        else:
            e("    v_min_u32 v12, s54, v12")
        e("    s_nop 1")
        for d in (1, 2, 4, 8):
            if d < NR:
                e(f"    v_add_u32_dpp v12, v12, v12 row_ror:{d} row_mask:0xf bank_mask:0xf")
                e("    s_nop 1")
        e("    v_readfirstlane_b32 s38, v12")
        e(f"    s_lshr_b32 s38, s38, {NR.bit_length()-1}")
        e("    s_sub_u32 s38, s55, s38")
        e(f"    s_add_u32 s38, s38, {1 << (sh-1)}")
        e(f"    s_ashr_i32 s38, s38, {sh}")
        e(f"    s_add_u32 s38, s38, {mid}")
        e(f"    s_max_i32 s38, s38, {wmin}")
        e(f"    s_min_i32 s38, s38, {wmax}")
        e("    s_lshl_b32 s39, s38, 18")
        e("    s_or_b32 s38, s38, s39")
        e("    s_and_b32 s38, s38, 0xc0000f")
        e("    v_mov_b32 v8, s38")
        e("    ds_write_b32 v7, v8 offset:24")
        e("L_next:")
        e(f"    s_add_u32 s31, s31, {9*M}")
        e(f"    s_cmp_lt_u32 s31, {9*(256 - M)}")
        e("    s_cbranch_scc1 L_epoch")
    e("    s_endpgm")
    e("L_consumer:")
    VA = 8
    VT = 14
    VE = 20
    VB = 24
    VACC = 40
    VQ = 56
    VP = 72
    VO = 76
    VX = 84
    NV = 100
    e("    v_mov_b32 v8, 0")
    e("    v_mov_b32 v9, 0")
    e(f"    v_mov_b32 v10, {enc(mid)}")
    e("    v_mov_b32 v11, 0")
    e("    s_lshr_b32 s3, s3, 7                   ; consumer 0/1")
    e("    s_cbranch_scc1 L_noinit")
    e("    ds_write_b32 v7, v8")
    e("    ds_write_b128 v7, v[8:11] offset:16")
    e("    ds_write_b64 v7, v[8:9] offset:32")
    e("    s_waitcnt lgkmcnt(0)")
    e("L_noinit:")
    e("    s_barrier")
    e("    s_load_dwordx2 s[4:5], s[0:1], 0       ; q")
    e("    s_load_dwordx2 s[14:15], s[0:1], 40    ; out")
    if gmin:
        e("    s_load_dwordx2 s[48:49], s[0:1], 48    ; dbg")
        e("    s_waitcnt lgkmcnt(0)")
        e("    s_not_b32 s62, s60" if gmin == 1 else "    s_mov_b32 s62, s60")
        e("    s_atomic_umax s62, s[48:49], 0")
    e("    v_and_b32 v0, 63, v0")
    e("    v_bfe_u32 v6, v0, 2, 2                 ; rr")
    e("    v_lshl_add_u32 v12, v5, 3, v6")
    e("    v_and_b32 v13, 1, v5")
    e("    v_lshl_add_u32 v6, v13, 2, v6")
    e("    s_lshl_b32 s28, s3, 2")
    e("    v_xor_b32 v6, s28, v6")
    e("    v_lshlrev_b32 v6, 5, v6")
    e("    v_lshl_add_u32 v6, v12, 8, v6")
    e("    v_and_b32 v13, 3, v0")
    e(f"    v_lshl_add_u32 v{VA}, v13, 3, v6")
    for j in range(1, 4):
        e(f"    v_xor_b32 v{VA+j}, {32*j}, v{VA}")
    e(f"    v_lshlrev_b32 v{VA+4}, 4, v0")
    e(f"    v_add_u32 v{VA+4}, 8192, v{VA+4}")
    e("    s_lshl_b32 s28, s3, 2")
    e(f"    v_add_u32 v3, s28, v7")
    e("    v_xor_b32 v2, 4, v3")
    e("    v_lshlrev_b32 v1, 8, v4")
    e("    v_lshl_add_u32 v1, v5, 3, v1")
    e("    s_lshl_b32 s28, s3, 7")
    e("    v_add_u32 v1, s28, v1")
    e("    s_lshl_b32 s28, s2, 12")
    e("    s_mov_b32 s18, 2048")
    e("    s_mov_b32 s19, 0x00020000")
    e("    s_mov_b32 s22, 2048")
    e("    s_mov_b32 s23, 0x00020000")
    e("    s_mov_b32 s31, 0                       ; chunk")
    e("    s_mov_b32 s32, 9")
    e("    s_mov_b32 s33, 0")
    e("    s_mov_b32 s34, 0")
    e("    s_waitcnt lgkmcnt(0)")
    e("    s_add_u32 s16, s4, s28")
    e("    s_addc_u32 s17, s5, 0")
    e("    s_add_u32 s20, s16, 2048")
    e("    s_addc_u32 s21, s17, 0")
    for j in range(4):
        off = f" offset:{32*j}" if j else ""
        e(f"    buffer_load_dwordx2 v[{VQ+2*j}:{VQ+2*j+1}], v1, s[16:19], 0 offen{off}")
    for j in range(4):
        off = f" offset:{32*j}" if j else ""
        e(f"    buffer_load_dwordx2 v[{VQ+8+2*j}:{VQ+8+2*j+1}], v1, s[20:23], 0 offen{off}")
    e("    s_add_u32 s16, s14, s28")
    e("    s_addc_u32 s17, s15, 0")
    e("    s_add_u32 s20, s16, 2048")
    e("    s_addc_u32 s21, s17, 0")

    def seg(tag, isK):
        for i in range(16):
            e(f"    v_mov_b32 v{VACC+i}, 0")
        e(f"L_{tag}:")
        for j in range(5):
            e(f"    v_add_u32 v{VT+j}, s34, v{VA+j}")
        e("    s_add_u32 s31, s31, 1")
        e("    v_mov_b32 v13, s31")
        e("    s_cmp_ge_u32 s33, s32")
        e(f"    s_cbranch_scc1 L_{tag}_go")
        e(f"L_{tag}_poll:")
        e("    ds_read_b32 v6, v7")
        e("    s_waitcnt lgkmcnt(0)")
        e("    v_readfirstlane_b32 s33, v6")
        decode(33)
        e("    s_cmp_lt_u32 s33, s32")
        e(f"    s_cbranch_scc1 L_{tag}_poll")
        e(f"L_{tag}_go:")
        e(f"    ds_read_b128 v[{VE}:{VE+3}], v{VT+4}")
        for j in range(4):
            e(f"    ds_read_b64_tr_b16 v[{VB+4*j}:{VB+4*j+1}], v{VT+j}")
            e(f"    ds_read_b64_tr_b16 v[{VB+4*j+2}:{VB+4*j+3}], v{VT+j} offset:1024")
        e("    ds_write_b32 v3, v13 offset:16")
        e("    s_add_u32 s32, s32, 9")
        e(f"    s_add_u32 s34, s34, {SLOT}")
        e(f"    s_cmp_eq_u32 s34, {SLOT*S}")
        e("    s_cselect_b32 s34, 0, s34")
        e("    s_and_b32 s28, s31, 63")
        for j in range(4):
            e(f"    s_waitcnt lgkmcnt({7-2*j})")
            a = VACC + 4 * j
            t = VB + 4 * j
            if isK:
                e(f"    v_mfma_f32_16x16x32_bf16 v[{a}:{a+3}], v[{t}:{t+3}], v[{VE}:{VE+3}], v[{a}:{a+3}]")
            else:
                e(f"    v_mfma_f32_16x16x32_bf16 v[{a}:{a+3}], v[{VE}:{VE+3}], v[{t}:{t+3}], v[{a}:{a+3}]")
        e(f"    s_cbranch_scc1 L_{tag}")

    e("L_head:")
    seg("k", True)
    T = VX
    e("    s_waitcnt vmcnt(0)")
    e("    s_nop 5")
    for j in range(4):
        e(f"    v_cvt_pk_bf16_f32 v{T+2*j}, v{VACC+4*j}, v{VACC+4*j+1}")
        e(f"    v_cvt_pk_bf16_f32 v{T+2*j+1}, v{VACC+4*j+2}, v{VACC+4*j+3}")
    e("    s_lshl_b32 s28, s3, 10")
    e(f"    s_add_u32 s28, s28, {SCX - 8192}")
    e(f"    v_mfma_f32_16x16x32_bf16 v[{T+8}:{T+11}], v[{T}:{T+3}], v[{VQ}:{VQ+3}], 0")
    e(f"    v_mfma_f32_16x16x32_bf16 v[{T+8}:{T+11}], v[{T+4}:{T+7}], v[{VQ+4}:{VQ+7}], v[{T+8}:{T+11}]")
    e(f"    v_add_u32 v14, s28, v{VA+4}")
    e("    v_xor_b32 v15, 16, v0")
    e("    v_xor_b32 v16, 32, v0")
    e("    v_lshlrev_b32 v15, 2, v15")
    e("    v_lshlrev_b32 v16, 2, v16")
    e("    s_xor_b32 s29, s3, 1")
    e("    s_lshl_b32 s29, s29, 10")
    e(f"    s_add_u32 s29, s29, {SCX - 8192}")
    e(f"    v_add_u32 v17, s29, v{VA+4}")
    e(f"    ds_write_b128 v14, v[{T+8}:{T+11}]")
    e("    ds_write_b32 v3, v13 offset:32")
    for i in range(8):
        e(f"    v_mov_b32 v{VQ+i}, v{VQ+8+i}")
    e("L_scpoll:")
    e("    ds_read_b32 v6, v2 offset:32")
    e("    s_waitcnt lgkmcnt(0)")
    e("    v_readfirstlane_b32 s28, v6")
    e("    s_cmp_lt_u32 s28, s31")
    e("    s_cbranch_scc1 L_scpoll")
    e(f"    ds_read_b128 v[{T}:{T+3}], v17")
    e("    s_waitcnt lgkmcnt(0)")
    for i in range(4):
        e(f"    v_add_f32 v{T+i}, v{T+i}, v{T+8+i}")

    def rnd():
        e(f"    v_cvt_pk_bf16_f32 v{T+4}, v{T}, v{T+1}")
        e(f"    v_cvt_pk_bf16_f32 v{T+5}, v{T+2}, v{T+3}")
        e(f"    v_lshlrev_b32 v{T}, 16, v{T+4}")
        e(f"    v_and_b32 v{T+1}, 0xffff0000, v{T+4}")
        e(f"    v_lshlrev_b32 v{T+2}, 16, v{T+5}")
        e(f"    v_and_b32 v{T+3}, 0xffff0000, v{T+5}")
    rnd()
    for i in range(4):
        e(f"    v_mul_f32 v{T+i}, 0x3db504f3, v{T+i}      ; 128^-0.5")
    rnd()
    e(f"    v_max_f32 v{T+4}, v{T}, v{T+1}")
    e(f"    v_max3_f32 v{T+4}, v{T+2}, v{T+3}, v{T+4}")
    e(f"    ds_bpermute_b32 v{T+5}, v15, v{T+4}")
    e("    s_waitcnt lgkmcnt(0)")
    e(f"    v_max_f32 v{T+4}, v{T+4}, v{T+5}")
    e(f"    ds_bpermute_b32 v{T+5}, v16, v{T+4}")
    e("    s_waitcnt lgkmcnt(0)")
    e(f"    v_max_f32 v{T+4}, v{T+4}, v{T+5}")
    for i in range(4):
        e(f"    v_sub_f32 v{T+i}, v{T+i}, v{T+4}")
    for i in range(4):
        e(f"    v_mul_f32 v{T+i}, 0x3fb8aa3b, v{T+i}      ; log2(e)")
    for i in range(4):
        e(f"    v_exp_f32 v{T+i}, v{T+i}")
    e("    s_nop 0")
    e(f"    v_add_f32 v{T+4}, v{T}, v{T+1}")
    e(f"    v_add_f32 v{T+5}, v{T+2}, v{T+3}")
    e(f"    v_add_f32 v{T+4}, v{T+4}, v{T+5}")
    e(f"    ds_bpermute_b32 v{T+5}, v15, v{T+4}")
    e("    s_waitcnt lgkmcnt(0)")
    e(f"    v_add_f32 v{T+4}, v{T+4}, v{T+5}")
    e(f"    ds_bpermute_b32 v{T+5}, v16, v{T+4}")
    e("    s_waitcnt lgkmcnt(0)")
    e(f"    v_add_f32 v{T+4}, v{T+4}, v{T+5}")
    e(f"    v_rcp_f32 v{T+4}, v{T+4}")
    e("    s_nop 0")
    for i in range(4):
        e(f"    v_mul_f32 v{T+i}, v{T+i}, v{T+4}")
    e(f"    v_cvt_pk_bf16_f32 v{VP}, v{T}, v{T+1}")
    e(f"    v_cvt_pk_bf16_f32 v{VP+1}, v{T+2}, v{T+3}")
    seg("v", False)
    e("    s_cmp_eq_u32 s31, 256")
    e("    s_nop 1")
    for j in range(4):
        e(f"    v_cvt_pk_bf16_f32 v{VB+2*j}, v{VACC+4*j}, v{VACC+4*j+1}")
        e(f"    v_cvt_pk_bf16_f32 v{VB+2*j+1}, v{VACC+4*j+2}, v{VACC+4*j+3}")
    for j in range(4):
        e(f"    v_mfma_f32_16x16x16_bf16 v[{T+4*j}:{T+4*j+3}], v[{VB+2*j}:{VB+2*j+1}], v[{VP}:{VP+1}], 0")
    e("    s_cbranch_scc1 L_final")
    e("    s_nop 7")
    for j in range(4):
        e(f"    v_cvt_pk_bf16_f32 v{VO+2*j}, v{T+4*j}, v{T+4*j+1}")
        e(f"    v_cvt_pk_bf16_f32 v{VO+2*j+1}, v{T+4*j+2}, v{T+4*j+3}")
    e("    s_branch L_head")
    e("L_final:")
    for j in range(4):
        off = f" offset:{32*j}" if j else ""
        e(f"    buffer_store_dwordx2 v[{VO+2*j}:{VO+2*j+1}], v1, s[16:19], 0 offen{off}{sfl}")
    for j in range(4):
        e(f"    v_cvt_pk_bf16_f32 v{VB+2*j}, v{T+4*j}, v{T+4*j+1}")
        e(f"    v_cvt_pk_bf16_f32 v{VB+2*j+1}, v{T+4*j+2}, v{T+4*j+3}")
        off = f" offset:{32*j}" if j else ""
        e(f"    buffer_store_dwordx2 v[{VB+2*j}:{VB+2*j+1}], v1, s[20:23], 0 offen{off}{sfl}")
    e("L_exit:")
    if gmin:
        e("    s_mov_b32 s62, 0")
        e("    s_atomic_umax s62, s[48:49], 0 glc")
        e("    s_waitcnt lgkmcnt(0)")
        e("    s_not_b32 s60, s62" if gmin == 1 else "    s_mov_b32 s60, s62")
    if spin:
        e("L_spin:")
        e("    s_memrealtime s[62:63]")
        e("    s_waitcnt lgkmcnt(0)")
        e("    s_sub_u32 s47, s62, s60")
        e(f"    s_cmp_lt_u32 s47, {spin}")
        e("    s_cbranch_scc1 L_spin")
    if stamp:
        e("    s_memrealtime s[62:63]")
        e("    s_load_dwordx2 s[50:51], s[0:1], 56    ; ws")
        e("    s_lshl_b32 s47, s2, 1")
        e("    s_add_u32 s46, s3, s47")
        e("    s_lshl_b32 s46, s46, 4")
        e("    s_waitcnt vmcnt(0) lgkmcnt(0)")
        e("    s_getreg_b32 s61, hwreg(HW_REG_XCC_ID)")
        e("    v_mov_b32 v12, s60")
        e("    v_mov_b32 v13, s61")
        e("    v_mov_b32 v14, s62")
        e("    v_mov_b32 v15, 0")
        e("    v_mov_b32 v16, s46")
        e("    global_store_dwordx4 v16, v[12:15], s[50:51]")
    e("L_done:")
    e("    s_endpgm")
    e('.section .rodata,"a"')
    e(".p2align 6")
    e(f".amdhsa_kernel {NAME}_kernel")
    e(f"  .amdhsa_next_free_vgpr {NV}")
    e("  .amdhsa_next_free_sgpr 64")
    e(f"  .amdhsa_accum_offset {(NV+3)//4*4}")
    e("  .amdhsa_group_segment_fixed_size 0")
    e("  .amdhsa_kernarg_size 64")
    e("  .amdhsa_user_sgpr_count 2")
    e("  .amdhsa_user_sgpr_kernarg_segment_ptr 1")
    e("  .amdhsa_system_sgpr_workgroup_id_x 1")
    e("  .amdhsa_float_denorm_mode_32 3")
    e(".end_amdhsa_kernel")
    return "\n".join(L) + "\n"


if __name__ == "__main__":
    import sys
    kw = {}
    out = "/dev/stdout"
    for a in sys.argv[1:]:
        k, v = a.split("=")
        if k == "o":
            out = v
            continue
        try:
            v = int(v)
        except ValueError:
            pass
        kw[k] = v
    open(out, "w").write(gen(**kw))
```

```python
NAME = "standalone__low_rank_proj_linformer__sampling"

HEADER = """; Kernarg layout for this problem (64 bytes, ptrs only, base s[0:1]):
"""


def enc(w):
    return (w & 15) | ((w >> 4) << 22)


def gen(pat="x5789a46", mid=24, wmin=20, wmax=36, sh=4, M=8, NR=8, ctl=1, stamp=0,
        flags="nt", sflags="", spin=0, probe=0, S=16, w0=0, we=0, ne=0, pf=1, vo=0, al=1, NB=3, early=0, wr=32, sub=2, psh=2, trace=0):
    L = []
    e = L.append
    pos = [int(ch, 16) + 8 for ch in pat[1:]]
    assert sorted(pos) == list(range(12, 19))
    i2, cpos = pos[0], pos[1:]
    SLOT = 9216
    FLG = S * SLOT
    SCX = FLG + 256
    LDS = SCX + 2048
    STR = 4352
    WSB = 1 << 20
    U = 4
    fl = f" {flags}" if flags else ""
    sfl = f" {sflags.replace('+', ' ')}" if sflags else ""
    if not w0:
        w0 = mid
    e(HEADER.rstrip())
    e(f"; @launch grid=(256,1,1) block=(256,1,1) lds={LDS}")
    e('.amdgcn_target "amdgcn-amd-amdhsa--gfx950"')
    e(".text")
    e(f".globl {NAME}_kernel")
    if al:
        e(".p2align 12")
    if al == 2:
        e(".fill 832, 4, 0xBF800000")
    e(".p2align 8")
    e(f".type {NAME}_kernel,@function")
    e(f"{NAME}_kernel:")
    if spin or stamp:
        e("    s_memrealtime s[60:61]")
    if stamp and probe:
        e("    s_memrealtime s[56:57]")
    e("    s_load_dwordx8 s[8:15], s[0:1], 8      ; k v e f")
    e("    v_readfirstlane_b32 s3, v0")
    e("    s_cmp_ge_u32 s2, 256")
    e("    s_cbranch_scc1 L_done")
    e("    v_and_b32 v4, 15, v0")
    e("    v_bfe_u32 v5, v0, 4, 2")
    e(f"    v_mov_b32 v7, {FLG}")
    e("    s_cmp_eq_u32 s3, 0")
    e("    s_cbranch_scc1 L_loader")
    e("    v_mov_b32 v8, 0")
    e("    v_mov_b32 v9, 0")
    e(f"    v_mov_b32 v10, {enc(mid)}")
    e("    ds_write_b32 v7, v8")
    e("    ds_write_b96 v7, v[8:10] offset:16")
    e("    ds_write_b64 v7, v[8:9] offset:32")
    e("    v_and_b32 v13, 31, v0")
    e("    s_bfe_u32 s29, s2, 0x40003")
    e("    s_lshl_b32 s29, s29, 7")
    e("    v_lshl_add_u32 v13, v13, 11, s29")
    e("    s_bitcmp1_b32 s2, 7")
    e("    s_waitcnt lgkmcnt(0)")
    e("    s_cselect_b64 s[20:21], s[14:15], s[12:13]")
    e("    s_cmp_lg_u32 s3, 192")
    e("    s_cbranch_scc1 L_meet")
    if pf:
        e("    global_load_dword v14, v13, s[20:21]")
    e("L_meet:")
    e("    s_barrier")
    e("    s_cbranch_scc1 L_consumer")
    e("    s_branch L_control")
    VD = 16
    VF = 32
    e("L_loader:")
    e("    v_lshlrev_b32 v6, 1, v5")
    e("    v_xor_b32 v6, v6, v4")
    e(f"    v_lshlrev_b32 v{VD}, 4, v6")
    e(f"    v_lshl_add_u32 v{VD}, v5, 8, v{VD}")
    e(f"    v_xor_b32 v{VD+1}, 0x80, v{VD}")
    e("    s_lshl_b32 s28, s2, 20")
    e("    s_mov_b32 s18, 0x100000")
    e("    s_mov_b32 s19, 0x00020000")
    e("    s_mov_b32 m0, 0")

    def doff(n):
        return ((n & 1) << i2) + (((n >> 1) & 1) << cpos[0]) + ((n >> 2) << cpos[1])

    for n in range(1, 2 * NB):
        e(f"    v_add_u32 v{VD+2*n}, {doff(n)}, v{VD}")
        e(f"    v_add_u32 v{VD+2*n+1}, {doff(n)}, v{VD+1}")
    e(f"    v_lshlrev_b32 v{VF}, 12, v4")
    e("    v_and_b32 v6, 1, v5")
    e(f"    v_lshl_add_u32 v{VF}, v6, 4, v{VF}")
    e("    v_lshrrev_b32 v6, 1, v5")
    e(f"    v_lshl_add_u32 v{VF}, v6, {i2-7}, v{VF}")
    e("    s_mov_b32 s22, 65536")
    e("    s_mov_b32 s23, 0x00020000")
    if probe == 3:
        e("    s_memrealtime s[60:61]")
    e("    s_waitcnt lgkmcnt(0)")
    if probe == 2:
        e("    s_memrealtime s[60:61]")
    e("    s_add_u32 s16, s8, s28")
    e("    s_addc_u32 s17, s9, 0")

    def dload(n, so):
        o = (n & 3) * 1024
        off = f" offset:{o}" if o else ""
        v = VD + 2 * (n >> 2) + ((n >> 1) & 1)
        e(f"    buffer_load_dwordx4 v{v}, s[16:19], {so} offen{off}{fl} lds")

    fill = ["s_mov_b64 s[20:21], s[12:13]", "s_mov_b32 s31, 0"]
    for n in range(1, 4):
        fill.append(f"v_add_u32 v{VF+n}, {doff(2*n) >> 7}, v{VF}")
    fill += ["s_mov_b32 s32, 0", "s_mov_b32 s33, 0",
             f"s_mov_b32 s36, {enc(w0)}", "s_mov_b32 s37, 0xc0000f"]
    for n in range(2 * NB, 8):
        fill.append(f"v_add_u32 v{VD+2*n}, {doff(n)}, v{VD}")
        fill.append(f"v_add_u32 v{VD+2*n+1}, {doff(n)}, v{VD+1}")
    for n in range(8 * NB):
        dload(n, "0")
        if n & 3 == 3:
            e("    s_add_u32 m0, m0, 4096")
            e("    " + (fill.pop(0) if fill else "s_nop 0"))
        if n & 7 == 7:
            e(f"    buffer_load_dwordx4 v{VF + n//8}, s[20:23], 0 offen lds")
            e("    s_add_u32 m0, m0, 1024")
            e("    " + (fill.pop(0) if fill else "s_nop 0"))
    if probe == 1:
        e("    s_memrealtime s[60:61]")
    for f in fill:
        e("    " + f)
    n_last = 8 * NB - 1
    if NB < U:
        e(f"    v_mov_b32 v12, {(n_last + n_last // 8) << 4}")
        e("    s_barrier")
        e(f"    s_branch L_p{8*NB}")
    else:
        e(f"    v_mov_b32 v12, {(n_last + n_last // 8) << 4}")
        e("    s_barrier")
        e("    ds_read_b96 v[8:10], v7 offset:16")
        e("    s_branch L_bodyend")
    e("L_body:")
    pubd = 0
    for n in range(8 * U):
        issued = n + n // 8
        e(f"L_p{n}:")
        e("    s_getreg_b32 s40, hwreg(HW_REG_IB_STS)")
        e("    s_and_b32 s40, s40, s37")
        e("    s_cmp_ge_u32 s40, s36")
        e(f"    s_cbranch_scc1 L_p{n}")
        dload(n, "s32")
        if n & 3 == 3:
            e("    s_add_u32 m0, m0, 4096")
            e(f"    v_add_u32 v12, {(issued - pubd) << 4}, v12")
            pubd = issued
            if n & 7 == 7:
                e(f"    buffer_load_dwordx4 v{VF + n//8}, s[20:23], s33 offen lds")
                e("    s_add_u32 m0, m0, 1024")
            if n % wr == wr - 1 and n != 8 * U - 1:
                e("    s_waitcnt lgkmcnt(0)")
                e("    v_readfirstlane_b32 s36, v10")
            e("    v_add_u32 v11, s40, v12")
            e("    ds_write_b32 v7, v11")
        if n == 8 * U - 5:
            e("    ds_read_b96 v[8:10], v7 offset:16")
        elif n % wr == wr - 5:
            e("    ds_read_b32 v10, v7 offset:24          ; window")
        if probe >= 4 and n == 31:
            e(f"    s_cmp_lg_u32 s31, {probe - 4}")
            e("    s_cbranch_scc1 L_nopr")
            e("    s_memrealtime s[60:61]")
            e("L_nopr:")
    e("L_bodyend:")
    e(f"    v_add_u32 v12, {(9*U - pubd) << 4}, v12")
    e(f"    s_add_u32 s31, s31, {U}")
    e("    s_cmp_eq_u32 s31, 256")
    e("    s_cbranch_scc1 L_drain")
    e(f"    s_cmp_eq_u32 m0, {SLOT*S}")
    e("    s_cselect_b32 m0, 0, m0")
    b_ = 2
    first = True
    while b_ < len(cpos):
        n = 1
        while b_ + n < len(cpos) and cpos[b_ + n] == cpos[b_] + n:
            n += 1
        e(f"    s_bfe_u32 s29, s31, {(n<<16) | b_}")
        if first:
            e(f"    s_lshl_b32 s32, s29, {cpos[b_]}")
        else:
            e(f"    s_lshl_b32 s29, s29, {cpos[b_]}")
            e("    s_or_b32 s32, s32, s29")
        first = False
        b_ += n
    e("    s_lshr_b32 s33, s32, 7")
    e(f"    s_bfe_u32 s29, s31, {(1<<16) | 7}")
    e("    s_lshl_b32 s29, s29, 19")
    e("    s_or_b32 s32, s32, s29")
    e("    s_bitcmp1_b32 s31, 6")
    e("    s_cselect_b64 s[16:17], s[10:11], s[8:9]")
    e("    s_cselect_b64 s[20:21], s[14:15], s[12:13]")
    e("    s_add_u32 s16, s16, s28")
    e("    s_addc_u32 s17, s17, 0")
    e("L_chkfree:")
    e("    s_waitcnt lgkmcnt(0)")
    e("    v_min_u32 v8, v8, v9")
    e("    v_readfirstlane_b32 s36, v10")
    e("    v_readfirstlane_b32 s29, v8")
    if ne:
        e(f"    s_cmp_ge_u32 s31, {256 - ne}")
        e(f"    s_cselect_b32 s36, {enc(we)}, s36")
    e(f"    s_add_u32 s29, s29, {S - U}")
    e("    s_cmp_le_u32 s31, s29")
    e("    s_cbranch_scc1 L_body")
    e("    s_getreg_b32 s40, hwreg(HW_REG_IB_STS)")
    e("    s_and_b32 s40, s40, s37")
    e("    v_add_u32 v11, s40, v12")
    e("    ds_write_b32 v7, v11")
    e("    ds_read_b96 v[8:10], v7 offset:16")
    e("    s_branch L_chkfree")
    e("L_drain:")
    e("    s_getreg_b32 s40, hwreg(HW_REG_IB_STS)")
    e("    s_and_b32 s40, s40, s37")
    e("    v_add_u32 v11, s40, v12")
    e("    ds_write_b32 v7, v11")
    e("    s_cbranch_scc1 L_drain")
    if probe == -1:
        e("    s_memrealtime s[60:61]")
    e("    s_branch L_exit" if probe else "    s_endpgm")

    def decode(d):
        e(f"    s_lshr_b32 s29, s{d}, 18")
        e(f"    s_and_b32 s30, s{d}, 15")
        e("    s_or_b32 s29, s29, s30")
        e(f"    s_bfe_u32 s{d}, s{d}, 0xe0004")
        e(f"    s_sub_u32 s{d}, s{d}, s29")

    e("L_control:")
    if ctl == 2:
        lM = M.bit_length() - 1
        e("    s_load_dwordx2 s[50:51], s[0:1], 56    ; ws")
        e("    s_memrealtime s[40:41]")
        e(f"    v_and_b32 v9, {NR-1}, v0")
        e(f"    v_mul_u32_u24 v9, {STR}, v9")
        e(f"    v_add_u32 v9, {WSB}, v9")
        e(f"    s_mul_i32 s58, s2, {STR}")
        e(f"    s_add_u32 s58, s58, {WSB + STR*NR}")
        e(f"    s_mov_b32 s31, {9*M}")
        e(f"    s_mov_b32 s33, {M}")
        e("    s_mov_b32 s52, 0")
        e("    s_mov_b32 s53, 0")
        e("    s_mov_b32 s56, 0")
        e("    s_mov_b64 exec, 0xffff")
        e("L_step:")
        e("    ds_read_b32 v8, v7")
        e("    s_waitcnt lgkmcnt(0)")
        e("    v_readfirstlane_b32 s28, v8")
        decode(28)
        e("    s_cmp_lt_u32 s28, s31")
        e("    s_cbranch_scc1 L_step")
        e("    s_memrealtime s[44:45]")
        e(f"    s_and_b32 s34, s33, {M-1}")
        e("    s_waitcnt lgkmcnt(0)")
        e("    s_sub_u32 s54, s44, s40                ; now")
        e(f"    s_cmp_lg_u32 s34, {sub}")
        e("    s_cbranch_scc1 L_nocons")
        e(f"    s_cmp_lt_u32 s33, {2*M}")
        e("    s_cbranch_scc1 L_nocons")
        e("    s_waitcnt vmcnt(0)")
        e("    v_subrev_u32 v12, s40, v12")
        if trace:
            e("    v_cmp_lt_u32 vcc, s55, v12")
            e("    s_nop 1")
            e("    s_bcnt1_i32_b64 s42, vcc")
        e("    v_min_u32 v12, s55, v12")
        e("    s_nop 1")
        for d in (1, 2, 4, 8):
            if d < NR:
                e(f"    v_add_u32_dpp v12, v12, v12 row_ror:{d} row_mask:0xf bank_mask:0xf")
                e("    s_nop 1")
        e("    v_readfirstlane_b32 s38, v12")
        e(f"    s_lshr_b32 s38, s38, {NR.bit_length()-1}")
        e("    s_sub_u32 s39, s38, s52")
        e("    s_mov_b32 s52, s38")
        e(f"    s_sub_u32 s56, s33, {M + sub}")
        e("    s_sub_u32 s38, s39, s53")
        e(f"    s_ashr_i32 s38, s38, {psh}")
        e("    s_add_u32 s38, s38, s53")
        e(f"    s_cmp_lt_u32 s33, {4*M}")
        e("    s_cselect_b32 s53, s39, s38")
        e("L_nocons:")
        e(f"    s_cmp_lt_u32 s33, {3*M + sub}")
        e("    s_cbranch_scc1 L_noctl")
        e("    s_sub_u32 s38, s33, s56")
        e("    s_mul_i32 s38, s38, s53")
        e(f"    s_lshr_b32 s38, s38, {lM}")
        e("    s_add_u32 s38, s38, s52")
        e("    s_sub_u32 s38, s54, s38")
        e(f"    s_add_u32 s38, s38, {1 << (sh-1)}")
        e(f"    s_ashr_i32 s38, s38, {sh}")
        e(f"    s_add_u32 s38, s38, {mid}")
        e(f"    s_max_i32 s38, s38, {wmin}")
        e(f"    s_min_i32 s38, s38, {wmax}")
        e("    s_lshl_b32 s39, s38, 18")
        e("    s_or_b32 s38, s38, s39")
        e("    s_and_b32 s38, s38, 0xc0000f")
        e("    v_mov_b32 v8, s38")
        e("    ds_write_b32 v7, v8 offset:24")
        if trace:
            e(f"    s_cmp_lg_u32 s34, {sub}")
            e("    s_cbranch_scc1 L_noctl")
            e(f"    s_lshr_b32 s43, s33, {lM}")
            e("    s_lshr_b32 s39, s39, 18")
            e("    s_mov_b32 m0, s43")
            e("    v_writelane_b32 v20, s54, m0")
            e("    v_writelane_b32 v21, s52, m0")
            e("    v_writelane_b32 v22, s42, m0")
            e("    v_writelane_b32 v23, s39, m0")
        e("L_noctl:")
        e("    s_cmp_lg_u32 s34, 0")
        e("    s_cbranch_scc1 L_noep")
        e("    s_mov_b32 s55, s54")
        e(f"    s_cmp_ge_u32 s2, {NR}")
        e("    s_cbranch_scc1 L_norep")
        e("    v_mov_b32 v10, s44")
        e("    v_mov_b32 v11, s44")
        e("    v_lshl_add_u32 v15, v4, 3, s58")
        e("    global_store_dwordx2 v15, v[10:11], s[50:51] sc0 sc1")
        e(f"    s_add_u32 s58, s58, {STR*NR}")
        e("L_norep:")
        e(f"    s_cmp_eq_u32 s33, {M}")
        e("    s_cbranch_scc1 L_nold")
        e("    global_load_dword v12, v9, s[50:51] sc0 sc1")
        e("L_nold:")
        e(f"    v_add_u32 v9, {STR*NR}, v9")
        e("L_noep:")
        e(f"    s_add_u32 s31, s31, {9*sub}")
        e(f"    s_add_u32 s33, s33, {sub}")
        e("    s_cmp_lt_u32 s33, 252")
        e("    s_cbranch_scc1 L_step")
    elif ctl:
        e("    s_load_dwordx2 s[50:51], s[0:1], 56    ; ws")
        e("    s_memrealtime s[40:41]")
        e(f"    v_and_b32 v9, {NR-1}, v0")
        e(f"    v_mul_u32_u24 v9, {STR}, v9")
        e(f"    v_add_u32 v9, {WSB}, v9")
        e(f"    s_mul_i32 s58, s2, {STR}")
        e(f"    s_add_u32 s58, s58, {WSB + STR*NR}")
        e(f"    s_mov_b32 s31, {9*M}")
        e("    s_mov_b32 s54, 0")
        e("    s_mov_b64 exec, 0xffff")
        e("L_epoch:")
        e("    ds_read_b32 v8, v7")
        e("    s_waitcnt lgkmcnt(0)")
        e("    v_readfirstlane_b32 s28, v8")
        decode(28)
        e("    s_cmp_lt_u32 s28, s31")
        e("    s_cbranch_scc1 L_epoch")
        e("    s_memrealtime s[44:45]")
        e("    s_mov_b32 s55, s54")
        e(f"    s_cmp_eq_u32 s31, {9*M}")
        e("    s_cbranch_scc1 L_first")
        e("    global_load_dword v12, v9, s[50:51] sc0 sc1")
        e("L_first:")
        e(f"    v_add_u32 v9, {STR*NR}, v9")
        e("    s_waitcnt lgkmcnt(0)")
        e("    s_sub_u32 s54, s44, s40")
        e(f"    s_cmp_ge_u32 s2, {NR}")
        e("    s_cbranch_scc1 L_norep")
        e("    v_mov_b32 v10, s44")
        e("    v_mov_b32 v11, s44")
        e("    v_lshl_add_u32 v15, v4, 3, s58")
        e("    global_store_dwordx2 v15, v[10:11], s[50:51] sc0 sc1")
        e(f"    s_add_u32 s58, s58, {STR*NR}")
        e("    s_waitcnt vmcnt(1)")
        e("    s_branch L_rep")
        e("L_norep:")
        e("    s_waitcnt vmcnt(0)")
        e("L_rep:")
        e(f"    s_cmp_eq_u32 s31, {9*M}")
        e("    s_cbranch_scc1 L_next")
        e("    v_subrev_u32 v12, s40, v12")
        if vo:
            e("    v_cmp_ge_u32 vcc, s54, v12")
            e("    v_mov_b32 v13, s55")
            e("    s_nop 0")
            e("    v_cndmask_b32 v12, v13, v12, vcc")
        else:
            if trace:
                e("    v_cmp_lt_u32 vcc, s54, v12")
                e("    s_nop 1")
                e("    s_bcnt1_i32_b64 s42, vcc")
            e("    v_min_u32 v12, s54, v12")
        e("    s_nop 1")
        for d in (1, 2, 4, 8):
            if d < NR:
                e(f"    v_add_u32_dpp v12, v12, v12 row_ror:{d} row_mask:0xf bank_mask:0xf")
                e("    s_nop 1")
        e("    v_readfirstlane_b32 s38, v12")
        e(f"    s_lshr_b32 s38, s38, {NR.bit_length()-1}")
        e("    s_mov_b32 s52, s38")
        e("    s_sub_u32 s38, s55, s38")
        e(f"    s_add_u32 s38, s38, {1 << (sh-1)}")
        e(f"    s_ashr_i32 s38, s38, {sh}")
        e(f"    s_add_u32 s38, s38, {mid}")
        e(f"    s_max_i32 s38, s38, {wmin}")
        e(f"    s_min_i32 s38, s38, {wmax}")
        e("    s_lshl_b32 s39, s38, 18")
        e("    s_or_b32 s38, s38, s39")
        e("    s_and_b32 s38, s38, 0xc0000f")
        e("    v_mov_b32 v8, s38")
        e("    ds_write_b32 v7, v8 offset:24")
        if trace:
            e(f"    s_mul_i32 s43, s31, {(1 << 16) // (9*M) + 1}")
            e("    s_lshr_b32 s43, s43, 16")
            e("    s_lshr_b32 s39, s39, 18")
            e("    s_mov_b32 m0, s43")
            e("    v_writelane_b32 v20, s54, m0")
            e("    v_writelane_b32 v21, s52, m0")
            e("    v_writelane_b32 v22, s42, m0")
            e("    v_writelane_b32 v23, s39, m0")
        e("L_next:")
        e(f"    s_add_u32 s31, s31, {9*M}")
        e(f"    s_cmp_lt_u32 s31, {9*(256 - M)}")
        e("    s_cbranch_scc1 L_epoch")
    if trace:
        e("    s_mov_b64 exec, -1")
        e("    v_writelane_b32 v20, s40, 0")
        e("    v_and_b32 v0, 63, v0")
        e("    s_lshl_b32 s28, s2, 10")
        e(f"    s_add_u32 s28, s28, {4 << 20}")
        e("    v_lshl_add_u32 v24, v0, 4, s28")
        e("    global_store_dwordx4 v24, v[20:23], s[50:51]")
    e("    s_endpgm")
    e("L_consumer:")
    VA = 8
    VT = 14
    VE = 20
    VB = 24
    VACC = 40
    VQ = 56
    VP = 72
    VO = 76
    VX = 84
    NV = 100
    e("    s_load_dwordx2 s[4:5], s[0:1], 0       ; q")
    e("    s_load_dwordx2 s[14:15], s[0:1], 40    ; out")
    e("    s_lshr_b32 s3, s3, 7                   ; consumer 0/1")
    e("    v_and_b32 v0, 63, v0")
    e("    v_bfe_u32 v6, v0, 2, 2                 ; rr")
    e("    v_lshl_add_u32 v12, v5, 3, v6")
    e("    v_and_b32 v13, 1, v5")
    e("    v_lshl_add_u32 v6, v13, 2, v6")
    e("    s_lshl_b32 s28, s3, 2")
    e("    v_xor_b32 v6, s28, v6")
    e("    v_lshlrev_b32 v6, 5, v6")
    e("    v_lshl_add_u32 v6, v12, 8, v6")
    e("    v_and_b32 v13, 3, v0")
    e(f"    v_lshl_add_u32 v{VA}, v13, 3, v6")
    for j in range(1, 4):
        e(f"    v_xor_b32 v{VA+j}, {32*j}, v{VA}")
    e(f"    v_lshlrev_b32 v{VA+4}, 4, v0")
    e(f"    v_add_u32 v{VA+4}, 8192, v{VA+4}")
    e("    v_add_u32 v3, s28, v7")
    e("    v_xor_b32 v2, 4, v3")
    e("    v_lshlrev_b32 v1, 8, v4")
    e("    v_lshl_add_u32 v1, v5, 3, v1")
    e("    s_lshl_b32 s28, s3, 7")
    e("    v_add_u32 v1, s28, v1")
    e("    s_lshl_b32 s28, s2, 12")
    e("    s_mov_b32 s18, 2048")
    e("    s_mov_b32 s19, 0x00020000")
    e("    s_mov_b32 s22, 2048")
    e("    s_mov_b32 s23, 0x00020000")
    e("    s_mov_b32 s31, 0                       ; chunk")
    e("    s_mov_b32 s32, 9")
    e("    s_mov_b32 s33, 0")
    e("    s_mov_b32 s34, 0")
    e("    s_waitcnt lgkmcnt(0)")
    e("    s_add_u32 s16, s4, s28")
    e("    s_addc_u32 s17, s5, 0")
    e("    s_add_u32 s20, s16, 2048")
    e("    s_addc_u32 s21, s17, 0")
    for j in range(4):
        off = f" offset:{32*j}" if j else ""
        e(f"    buffer_load_dwordx2 v[{VQ+2*j}:{VQ+2*j+1}], v1, s[16:19], 0 offen{off}")
    for j in range(4):
        off = f" offset:{32*j}" if j else ""
        e(f"    buffer_load_dwordx2 v[{VQ+8+2*j}:{VQ+8+2*j+1}], v1, s[20:23], 0 offen{off}")
    e("    s_add_u32 s16, s14, s28")
    e("    s_addc_u32 s17, s15, 0")
    e("    s_add_u32 s20, s16, 2048")
    e("    s_addc_u32 s21, s17, 0")
    if early == 2:
        e("    s_mov_b32 s18, 0")

    def seg(tag, isK):
        for i in range(16):
            e(f"    v_mov_b32 v{VACC+i}, 0")
        e(f"L_{tag}:")
        for j in range(5):
            e(f"    v_add_u32 v{VT+j}, s34, v{VA+j}")
        e("    s_add_u32 s31, s31, 1")
        e("    v_mov_b32 v13, s31")
        e("    s_cmp_ge_u32 s33, s32")
        e(f"    s_cbranch_scc1 L_{tag}_go")
        e(f"L_{tag}_poll:")
        e("    ds_read_b32 v6, v7")
        e("    s_waitcnt lgkmcnt(0)")
        e("    v_readfirstlane_b32 s33, v6")
        decode(33)
        e("    s_cmp_lt_u32 s33, s32")
        e(f"    s_cbranch_scc1 L_{tag}_poll")
        e(f"L_{tag}_go:")
        e(f"    ds_read_b128 v[{VE}:{VE+3}], v{VT+4}")
        for j in range(4):
            e(f"    ds_read_b64_tr_b16 v[{VB+4*j}:{VB+4*j+1}], v{VT+j}")
            e(f"    ds_read_b64_tr_b16 v[{VB+4*j+2}:{VB+4*j+3}], v{VT+j} offset:1024")
        e("    ds_write_b32 v3, v13 offset:16")
        e("    s_add_u32 s32, s32, 9")
        e(f"    s_add_u32 s34, s34, {SLOT}")
        e(f"    s_cmp_eq_u32 s34, {SLOT*S}")
        e("    s_cselect_b32 s34, 0, s34")
        e("    s_and_b32 s28, s31, 63")
        for j in range(4):
            e(f"    s_waitcnt lgkmcnt({7-2*j})")
            a = VACC + 4 * j
            t = VB + 4 * j
            if isK:
                e(f"    v_mfma_f32_16x16x32_bf16 v[{a}:{a+3}], v[{t}:{t+3}], v[{VE}:{VE+3}], v[{a}:{a+3}]")
            else:
                e(f"    v_mfma_f32_16x16x32_bf16 v[{a}:{a+3}], v[{VE}:{VE+3}], v[{t}:{t+3}], v[{a}:{a+3}]")
        e(f"    s_cbranch_scc1 L_{tag}")

    e("L_head:")
    seg("k", True)
    T = VX
    e("    s_waitcnt vmcnt(0)")
    e("    s_nop 5")
    for j in range(4):
        e(f"    v_cvt_pk_bf16_f32 v{T+2*j}, v{VACC+4*j}, v{VACC+4*j+1}")
        e(f"    v_cvt_pk_bf16_f32 v{T+2*j+1}, v{VACC+4*j+2}, v{VACC+4*j+3}")
    e("    s_lshl_b32 s28, s3, 10")
    e(f"    s_add_u32 s28, s28, {SCX - 8192}")
    e(f"    v_mfma_f32_16x16x32_bf16 v[{T+8}:{T+11}], v[{T}:{T+3}], v[{VQ}:{VQ+3}], 0")
    e(f"    v_mfma_f32_16x16x32_bf16 v[{T+8}:{T+11}], v[{T+4}:{T+7}], v[{VQ+4}:{VQ+7}], v[{T+8}:{T+11}]")
    e(f"    v_add_u32 v14, s28, v{VA+4}")
    e("    v_xor_b32 v15, 16, v0")
    e("    v_xor_b32 v16, 32, v0")
    e("    v_lshlrev_b32 v15, 2, v15")
    e("    v_lshlrev_b32 v16, 2, v16")
    e("    s_xor_b32 s29, s3, 1")
    e("    s_lshl_b32 s29, s29, 10")
    e(f"    s_add_u32 s29, s29, {SCX - 8192}")
    e(f"    v_add_u32 v17, s29, v{VA+4}")
    e(f"    ds_write_b128 v14, v[{T+8}:{T+11}]")
    e("    ds_write_b32 v3, v13 offset:32")
    for i in range(8):
        e(f"    v_mov_b32 v{VQ+i}, v{VQ+8+i}")
    e("L_scpoll:")
    e("    ds_read_b32 v6, v2 offset:32")
    e("    s_waitcnt lgkmcnt(0)")
    e("    v_readfirstlane_b32 s28, v6")
    e("    s_cmp_lt_u32 s28, s31")
    e("    s_cbranch_scc1 L_scpoll")
    e(f"    ds_read_b128 v[{T}:{T+3}], v17")
    e("    s_waitcnt lgkmcnt(0)")
    for i in range(4):
        e(f"    v_add_f32 v{T+i}, v{T+i}, v{T+8+i}")

    def rnd():
        e(f"    v_cvt_pk_bf16_f32 v{T+4}, v{T}, v{T+1}")
        e(f"    v_cvt_pk_bf16_f32 v{T+5}, v{T+2}, v{T+3}")
        e(f"    v_lshlrev_b32 v{T}, 16, v{T+4}")
        e(f"    v_and_b32 v{T+1}, 0xffff0000, v{T+4}")
        e(f"    v_lshlrev_b32 v{T+2}, 16, v{T+5}")
        e(f"    v_and_b32 v{T+3}, 0xffff0000, v{T+5}")
    rnd()
    for i in range(4):
        e(f"    v_mul_f32 v{T+i}, 0x3db504f3, v{T+i}      ; 128^-0.5")
    rnd()
    e(f"    v_max_f32 v{T+4}, v{T}, v{T+1}")
    e(f"    v_max3_f32 v{T+4}, v{T+2}, v{T+3}, v{T+4}")
    e(f"    ds_bpermute_b32 v{T+5}, v15, v{T+4}")
    e("    s_waitcnt lgkmcnt(0)")
    e(f"    v_max_f32 v{T+4}, v{T+4}, v{T+5}")
    e(f"    ds_bpermute_b32 v{T+5}, v16, v{T+4}")
    e("    s_waitcnt lgkmcnt(0)")
    e(f"    v_max_f32 v{T+4}, v{T+4}, v{T+5}")
    for i in range(4):
        e(f"    v_sub_f32 v{T+i}, v{T+i}, v{T+4}")
    for i in range(4):
        e(f"    v_mul_f32 v{T+i}, 0x3fb8aa3b, v{T+i}      ; log2(e)")
    for i in range(4):
        e(f"    v_exp_f32 v{T+i}, v{T+i}")
    e("    s_nop 0")
    e(f"    v_add_f32 v{T+4}, v{T}, v{T+1}")
    e(f"    v_add_f32 v{T+5}, v{T+2}, v{T+3}")
    e(f"    v_add_f32 v{T+4}, v{T+4}, v{T+5}")
    e(f"    ds_bpermute_b32 v{T+5}, v15, v{T+4}")
    e("    s_waitcnt lgkmcnt(0)")
    e(f"    v_add_f32 v{T+4}, v{T+4}, v{T+5}")
    e(f"    ds_bpermute_b32 v{T+5}, v16, v{T+4}")
    e("    s_waitcnt lgkmcnt(0)")
    e(f"    v_add_f32 v{T+4}, v{T+4}, v{T+5}")
    e(f"    v_rcp_f32 v{T+4}, v{T+4}")
    e("    s_nop 0")
    for i in range(4):
        e(f"    v_mul_f32 v{T+i}, v{T+i}, v{T+4}")
    e(f"    v_cvt_pk_bf16_f32 v{VP}, v{T}, v{T+1}")
    e(f"    v_cvt_pk_bf16_f32 v{VP+1}, v{T+2}, v{T+3}")
    if early == 2:
        for j in range(4):
            off = f" offset:{32*j}" if j else ""
            e(f"    buffer_store_dwordx2 v[{VO+2*j}:{VO+2*j+1}], v1, s[16:19], 0 offen{off}{sfl}")
    seg("v", False)
    e("    s_cmp_eq_u32 s31, 256")
    e("    s_nop 1")
    for j in range(4):
        e(f"    v_cvt_pk_bf16_f32 v{VB+2*j}, v{VACC+4*j}, v{VACC+4*j+1}")
        e(f"    v_cvt_pk_bf16_f32 v{VB+2*j+1}, v{VACC+4*j+2}, v{VACC+4*j+3}")
    for j in range(4):
        e(f"    v_mfma_f32_16x16x16_bf16 v[{T+4*j}:{T+4*j+3}], v[{VB+2*j}:{VB+2*j+1}], v[{VP}:{VP+1}], 0")
    if early == 1:
        e("    s_nop 4")
        for j in range(4):
            e(f"    v_cvt_pk_bf16_f32 v{VB+2*j}, v{T+4*j}, v{T+4*j+1}")
            e(f"    v_cvt_pk_bf16_f32 v{VB+2*j+1}, v{T+4*j+2}, v{T+4*j+3}")
            off = f" offset:{32*j}" if j else ""
            e(f"    buffer_store_dwordx2 v[{VB+2*j}:{VB+2*j+1}], v1, s[16:19], 0 offen{off}{sfl}")
        e("    s_mov_b64 s[16:17], s[20:21]")
        e("    s_cbranch_scc0 L_head")
    else:
        e("    s_cbranch_scc1 L_final")
        e("    s_nop 7")
        for j in range(4):
            e(f"    v_cvt_pk_bf16_f32 v{VO+2*j}, v{T+4*j}, v{T+4*j+1}")
            e(f"    v_cvt_pk_bf16_f32 v{VO+2*j+1}, v{T+4*j+2}, v{T+4*j+3}")
        if early == 2:
            e("    s_mov_b32 s18, 2048")
        e("    s_branch L_head")
        e("L_final:")
        if early == 0:
            for j in range(4):
                off = f" offset:{32*j}" if j else ""
                e(f"    buffer_store_dwordx2 v[{VO+2*j}:{VO+2*j+1}], v1, s[16:19], 0 offen{off}{sfl}")
        else:
            e("    s_nop 3")
        for j in range(4):
            e(f"    v_cvt_pk_bf16_f32 v{VB+2*j}, v{T+4*j}, v{T+4*j+1}")
            e(f"    v_cvt_pk_bf16_f32 v{VB+2*j+1}, v{T+4*j+2}, v{T+4*j+3}")
            off = f" offset:{32*j}" if j else ""
            e(f"    buffer_store_dwordx2 v[{VB+2*j}:{VB+2*j+1}], v1, s[20:23], 0 offen{off}{sfl}")
    if stamp and probe:
        e("    s_endpgm")
    e("L_exit:")
    if spin:
        e("L_spin:")
        e("    s_memrealtime s[62:63]")
        e("    s_waitcnt lgkmcnt(0)")
        e("    s_sub_u32 s47, s62, s60")
        e(f"    s_cmp_lt_u32 s47, {spin}")
        e("    s_cbranch_scc1 L_spin")
    if stamp:
        if stamp == 2:
            e("    s_waitcnt vmcnt(0)")
        e("    s_memrealtime s[62:63]")
        e("    s_load_dwordx2 s[50:51], s[0:1], 56    ; ws")
        e("    s_lshl_b32 s47, s2, 1" if not probe else "    s_mov_b32 s47, s2")
        e("    s_add_u32 s46, s3, s47")
        e("    s_lshl_b32 s46, s46, 4")
        e("    s_waitcnt vmcnt(0) lgkmcnt(0)")
        e("    s_getreg_b32 s61, hwreg(HW_REG_XCC_ID)")
        e("    v_mov_b32 v12, s60" if not probe else "    v_mov_b32 v12, s56")
        e("    v_mov_b32 v13, s61")
        e("    v_mov_b32 v14, s62" if not probe else "    v_mov_b32 v14, s60")
        e("    v_mov_b32 v15, 0")
        e("    v_mov_b32 v16, s46")
        e("    global_store_dwordx4 v16, v[12:15], s[50:51]")
    e("L_done:")
    e("    s_endpgm")
    e('.section .rodata,"a"')
    e(".p2align 6")
    e(f".amdhsa_kernel {NAME}_kernel")
    e(f"  .amdhsa_next_free_vgpr {NV}")
    e("  .amdhsa_next_free_sgpr 64")
    e(f"  .amdhsa_accum_offset {(NV+3)//4*4}")
    e("  .amdhsa_group_segment_fixed_size 0")
    e("  .amdhsa_kernarg_size 64")
    e("  .amdhsa_user_sgpr_count 2")
    e("  .amdhsa_user_sgpr_kernarg_segment_ptr 1")
    e("  .amdhsa_system_sgpr_workgroup_id_x 1")
    e("  .amdhsa_float_denorm_mode_32 3")
    e(".end_amdhsa_kernel")
    return "\n".join(L) + "\n"


if __name__ == "__main__":
    import sys
    kw = {}
    out = "/dev/stdout"
    for a in sys.argv[1:]:
        k, v = a.split("=")
        if k == "o":
            out = v
            continue
        try:
            v = int(v)
        except ValueError:
            pass
        kw[k] = v
    open(out, "w").write(gen(**kw))
```

```python
NAME = "standalone__low_rank_proj_linformer__sampling"

HEADER = """; Kernarg layout for this problem (64 bytes, ptrs only, base s[0:1]):
"""


def enc(w):
    return (w & 15) | ((w >> 4) << 22)


def gen(pat="x5789a46", mid=24, wmin=21, wmax=34, sh=3, M=8, NR=8, ctl=2, stamp=0,
        flags="nt", sflags="", spin=0, probe=0, S=16, w0=0, we=0, ne=0, pf=1, vo=0, al=1, NB=3, wr=8, sub=2, psh=2, trace=0,
        w='22.23.25.20.21.24.26.27', x11='x4', x13='x47', P0=214, est=4, glo=24, ghi=32, knee=0, ksh=1, wi=0, skip=1, up=80, dn=59, BT=107, rob=1, pc=12):
    L = []
    e = L.append
    pos = [int(ch, 16) + 8 for ch in pat[1:]]
    assert sorted(pos) == list(range(12, 19))
    i2, cpos = pos[0], pos[1:]
    SLOT = 9216
    FLG = S * SLOT
    SCX = FLG + 256
    LDS = SCX + 2048
    STR = 4352
    WSB = 1 << 20
    U = 4
    fl = f" {flags}" if flags else ""
    sfl = f" {sflags.replace('+', ' ')}" if sflags else ""
    if not w0:
        w0 = wi or mid
    e(HEADER.rstrip())
    e(f"; @launch grid=(256,1,1) block=(256,1,1) lds={LDS}")
    e('.amdgcn_target "amdgcn-amd-amdhsa--gfx950"')
    e(".text")
    e(f".globl {NAME}_kernel")
    if al:
        e(".p2align 12")
    if al == 2:
        e(".fill 832, 4, 0xBF800000")
    e(".p2align 8")
    e(f".type {NAME}_kernel,@function")
    e(f"{NAME}_kernel:")
    if spin or stamp:
        e("    s_memrealtime s[60:61]")
    if stamp and probe:
        e("    s_memrealtime s[56:57]")
    e("    s_load_dwordx8 s[8:15], s[0:1], 8      ; k v e f")
    e("    v_readfirstlane_b32 s3, v0")
    e("    s_cmp_ge_u32 s2, 256")
    e("    s_cbranch_scc1 L_done")
    e("    v_and_b32 v4, 15, v0")
    e("    v_bfe_u32 v5, v0, 4, 2")
    e(f"    v_mov_b32 v7, {FLG}")

    def blockid(d):
        wb = [int(t) - 20 for t in str(w).split(".")]
        b = 0
        first = True
        while b < 8:
            n = 1
            while b + n < 8 and wb[b + n] == wb[b] + n:
                n += 1
            t = d if first else 29
            if wb[b] == b:
                e(f"    s_and_b32 s{t}, s2, {((1 << n) - 1) << b}")
            else:
                e(f"    s_bfe_u32 s{t}, s2, {(n << 16) | b:#x}")
                if wb[b]:
                    e(f"    s_lshl_b32 s{t}, s{t}, {wb[b]}")
            if not first:
                e(f"    s_or_b32 s{d}, s{d}, s29")
            first = False
            b += n
    e("    s_cmp_eq_u32 s3, 0")
    e("    s_cbranch_scc1 L_loader")
    e("    v_mov_b32 v8, 0")
    e("    v_mov_b32 v9, 0")
    e(f"    v_mov_b32 v10, {enc(wi or mid)}")
    e("    ds_write_b32 v7, v8")
    e("    v_mov_b32 v11, 0")
    e("    ds_write_b128 v7, v[8:11] offset:16")
    e("    ds_write_b64 v7, v[8:9] offset:32")
    e("    v_and_b32 v13, 31, v0")
    e("    s_bfe_u32 s29, s2, 0x40003")
    e("    s_lshl_b32 s29, s29, 7")
    e("    v_lshl_add_u32 v13, v13, 11, s29")
    e("    s_bitcmp1_b32 s2, 7")
    e("    s_waitcnt lgkmcnt(0)")
    e("    s_cselect_b64 s[20:21], s[14:15], s[12:13]")
    e("    s_cmp_lg_u32 s3, 192")
    e("    s_cbranch_scc1 L_meet")
    if pf:
        e("    global_load_dword v14, v13, s[20:21]")
    e("L_meet:")
    e("    s_barrier")
    e("    s_cbranch_scc1 L_consumer")
    e("    s_branch L_control")
    VD = 16
    VF = 32
    e("L_loader:")
    assert i2 == 13

    def parity(d, bits):
        m = sum(1 << int(c) for c in bits[1:])
        if not m:
            e(f"    s_mov_b32 s{d}, 0")
        elif len(bits) == 2:
            e(f"    s_bfe_u32 s{d}, s2, {(1 << 16) | int(bits[1]):#x}")
        else:
            e(f"    s_and_b32 s{d}, s2, {m}")
            e(f"    s_bcnt1_i32_b32 s{d}, s{d}")
            e(f"    s_and_b32 s{d}, s{d}, 1")
    parity(24, x11)
    parity(25, x13)
    e("    v_lshlrev_b32 v6, 1, v5")
    e("    v_xor_b32 v6, v6, v4")
    e("    v_lshlrev_b32 v6, 4, v6")
    e("    v_lshl_add_u32 v6, v5, 8, v6")
    e("    s_lshl_b32 s26, s25, 13")
    e("    s_lshl_b32 s27, s24, 11")
    e("    s_add_u32 s26, s26, 2048")
    e("    s_add_u32 s30, s26, s27")
    e("    s_sub_u32 s26, s26, s27")
    e(f"    v_add_u32 v{VD}, s30, v6")
    e("    v_xor_b32 v6, 0x80, v6")
    e(f"    v_add_u32 v{VD+1}, s26, v6")
    e(f"    v_xor_b32 v{VD+2}, 8192, v{VD}")
    e(f"    v_xor_b32 v{VD+3}, 8192, v{VD+1}")
    blockid(28)
    e("    s_lshl_b32 s28, s28, 20")
    e("    s_mov_b32 s18, 0x100800")
    e("    s_mov_b32 s19, 0x00020000")
    e("    s_mov_b32 m0, 0")

    def doff(n):
        return (((n >> 1) & 1) << cpos[0]) + ((n >> 2) << cpos[1])

    def dtab(n):
        return [f"v_add_u32 v{VD+2*n}, {doff(n)}, v{VD+2*(n&1)}", f"v_add_u32 v{VD+2*n+1}, {doff(n)}, v{VD+2*(n&1)+1}"]

    e("    s_lshl_b32 s25, s25, 1")
    e("    s_or_b32 s24, s24, s25")
    e("    v_xor_b32 v5, s24, v5")
    e(f"    v_lshlrev_b32 v{VF}, 12, v4")
    e("    v_and_b32 v6, 1, v5")
    e(f"    v_lshl_add_u32 v{VF}, v6, 4, v{VF}")
    e("    v_lshrrev_b32 v6, 1, v5")
    e(f"    v_lshl_add_u32 v{VF}, v6, {i2-7}, v{VF}")
    e("    s_mov_b32 s22, 65536")
    e("    s_mov_b32 s23, 0x00020000")
    if probe == 3:
        e("    s_memrealtime s[60:61]")
    e("    s_waitcnt lgkmcnt(0)")
    if probe == 2:
        e("    s_memrealtime s[60:61]")
    e("    s_sub_u32 s8, s8, 2048")
    e("    s_subb_u32 s9, s9, 0")
    e("    s_add_u32 s16, s8, s28")
    e("    s_addc_u32 s17, s9, 0")

    def dload(n, so):
        o = (n & 3) * 1024
        off = f" offset:{o}" if o else ""
        v = VD + 2 * (n >> 2) + ((n >> 1) & 1)
        e(f"    buffer_load_dwordx4 v{v}, s[16:19], {so} offen{off}{fl} lds")

    pre = {3: ["s_mov_b64 s[20:21], s[12:13]"]}
    for c in range(1, 4):
        pre.setdefault(8 * c - 5, []).extend(dtab(2 * c))
        pre.setdefault(8 * c - 1, []).extend(dtab(2 * c + 1) + [f"v_add_u32 v{VF+c}, {doff(2*c) >> 7}, v{VF}"])
    fill = []
    for n in range(8 * NB):
        dload(n, "0")
        if n & 3 == 3:
            e("    s_add_u32 m0, m0, 4096")
            f = pre.pop(n, ["s_nop 0", "s_nop 0"])
            if n & 7 == 7:
                e("    " + f.pop(0))
                e(f"    buffer_load_dwordx4 v{VF + n//8}, s[20:23], 0 offen lds")
                e("    s_add_u32 m0, m0, 1024")
            for x in f:
                e("    " + x)
    for n in sorted(pre):
        fill += pre[n]
    fill += ["s_mov_b32 s31, 0", "s_mov_b32 s32, 0", "s_mov_b32 s33, 0",
             f"s_mov_b32 s36, {enc(w0)}", "s_mov_b32 s37, 0xc0000f", "s_mov_b32 s38, 0xffff0001",
             "s_sub_u32 s10, s10, 2048", "s_subb_u32 s11, s11, 0", "s_add_u32 s10, s10, s28", "s_addc_u32 s11, s11, 0"]
    if probe == 1:
        e("    s_memrealtime s[60:61]")
    for f in fill:
        e("    " + f)
    n_last = 8 * NB - 1
    if NB < U:
        e(f"    v_mov_b32 v12, {(n_last + n_last // 8) << 4}")
        e("    s_barrier")
        e(f"    s_branch L_p{8*NB}")
    else:
        e(f"    v_mov_b32 v12, {(n_last + n_last // 8) << 4}")
        e("    s_barrier")
        e("    ds_read_b128 v[36:39], v7 offset:16")
        e("    s_branch L_bodyend")
    e("L_body:")
    pubd = 0
    for n in range(8 * U):
        issued = n + n // 8
        e(f"L_p{n}:")
        e("    s_getreg_b32 s40, hwreg(HW_REG_IB_STS)")
        e("    s_and_b32 s40, s40, s37")
        e("    s_cmp_ge_u32 s40, s36")
        e(f"    s_cbranch_scc1 L_p{n}")
        dload(n, "s32")
        if n & 3 == 3:
            e("    s_add_u32 m0, m0, 4096")
            e(f"    v_add_u32 v12, {(issued - pubd) << 4}, v12")
            pubd = issued
            if n & 7 == 7:
                e(f"    buffer_load_dwordx4 v{VF + n//8}, s[20:23], s33 offen lds")
                e("    s_add_u32 m0, m0, 1024")
            if n % wr == wr - 1 and n != 8 * U - 1:
                e("    s_waitcnt lgkmcnt(0)")
                e("    v_readfirstlane_b32 s36, v10")
            e("    v_add_u32 v11, s40, v12")
            e("    ds_write_b32 v7, v11")
        if n == 8 * U - 5:
            e("    ds_read_b128 v[36:39], v7 offset:16")
        elif n % wr == wr - 5:
            e("    ds_read_b32 v10, v7 offset:24          ; window")
        if probe >= 4 and n == 31:
            e(f"    s_cmp_lg_u32 s31, {probe - 4}")
            e("    s_cbranch_scc1 L_nopr")
            e("    s_memrealtime s[60:61]")
            e("L_nopr:")
    e("L_bodyend:")
    e(f"    v_add_u32 v12, {(9*U - pubd) << 4}, v12")
    e(f"    s_add_u32 s31, s31, {U}")
    e("    s_cmp_eq_u32 s31, 256")
    e("    s_cbranch_scc1 L_drain")
    e(f"    s_cmp_eq_u32 m0, {SLOT*S}")
    e("    s_cselect_b32 m0, 0, m0")
    e("    s_bitcmp1_b32 s31, 7                   ; order: K0 K1 V0 V1")
    e("    s_cselect_b64 s[16:17], s[10:11], s[16:17]")
    e("    s_cselect_b64 s[20:21], s[14:15], s[20:21]")
    e("    s_bfe_u32 s30, s31, 0x40002")
    e("    s_cselect_b32 s38, s38, 0xffff0000")
    e("L_chkfree:")
    e("    s_waitcnt lgkmcnt(0)")
    e("    v_min_u32 v36, v36, v37")
    e("    v_readfirstlane_b32 s36, v38")
    e("    v_readfirstlane_b32 s29, v36")
    e("    v_readfirstlane_b32 s39, v39")
    e(f"    s_add_u32 s29, s29, {S - U}")
    e("    s_cmp_gt_u32 s31, s29")
    e("    s_cbranch_scc1 L_full")
    e("    s_add_u32 s30, s30, s39")
    e("    s_ff0_i32_b32 s29, s38")
    e("    s_bitcmp1_b32 s38, s30")
    e("    s_cselect_b32 s30, s29, s30")
    e("    s_bitset1_b32 s38, s30")
    b_ = 2
    first = True
    while b_ < len(cpos):
        n = 1
        while b_ + n < len(cpos) and cpos[b_ + n] == cpos[b_] + n:
            n += 1
        e(f"    s_bfe_u32 s29, s30, {(n<<16) | (b_ - 2):#x}")
        if first:
            e(f"    s_lshl_b32 s32, s29, {cpos[b_]}")
        else:
            e(f"    s_lshl_b32 s29, s29, {cpos[b_]}")
            e("    s_or_b32 s32, s32, s29")
        first = False
        b_ += n
    e("    s_lshr_b32 s33, s32, 7")
    e(f"    s_bfe_u32 s29, s31, {(1<<16) | 6:#x}")
    e("    s_lshl_b32 s29, s29, 19")
    e("    s_or_b32 s32, s32, s29")
    e("    s_branch L_body")
    e("L_full:")
    e("    s_getreg_b32 s40, hwreg(HW_REG_IB_STS)")
    e("    s_and_b32 s40, s40, s37")
    e("    v_add_u32 v11, s40, v12")
    e("    ds_write_b32 v7, v11")
    e("    ds_read_b128 v[36:39], v7 offset:16")
    e("    s_branch L_chkfree")
    e("L_drain:")
    e("    s_getreg_b32 s40, hwreg(HW_REG_IB_STS)")
    e("    s_and_b32 s40, s40, s37")
    e("    v_add_u32 v11, s40, v12")
    e("    ds_write_b32 v7, v11")
    e("    s_cbranch_scc1 L_drain")
    if probe == -1:
        e("    s_memrealtime s[60:61]")
    e("    s_branch L_exit" if probe else "    s_endpgm")

    def decode(d):
        e(f"    s_lshr_b32 s29, s{d}, 18")
        e(f"    s_and_b32 s30, s{d}, 15")
        e("    s_or_b32 s29, s29, s30")
        e(f"    s_bfe_u32 s{d}, s{d}, 0xe0004")
        e(f"    s_sub_u32 s{d}, s{d}, s29")

    e("L_control:")
    if ctl == 3:
        lM = M.bit_length() - 1
        e("    s_load_dwordx2 s[50:51], s[0:1], 56    ; ws")
        e("    s_memrealtime s[40:41]")
        e(f"    v_and_b32 v9, {NR-1}, v0")
        e(f"    v_mul_u32_u24 v9, {STR}, v9")
        e(f"    v_add_u32 v9, {WSB}, v9")
        e(f"    s_mul_i32 s58, s2, {STR}")
        e(f"    s_add_u32 s58, s58, {WSB}")
        e(f"    s_mov_b32 s31, {9*est}")
        e(f"    s_mov_b32 s33, {est}")
        e("    s_mov_b32 s52, 0")
        e(f"    s_mov_b32 s53, {P0}")
        e("    s_mov_b32 s56, 0")
        e("    s_mov_b32 s57, 0")
        e("    s_mov_b32 s55, 0")
        e("    s_mov_b32 s35, 0")
        e("    s_mov_b64 exec, 0xffff")
        e("    s_waitcnt lgkmcnt(0)")
        e("    s_sub_u32 s40, s40, 300")
        e("L_step:")
        e("    ds_read_b32 v8, v7")
        e("    s_waitcnt lgkmcnt(0)")
        e("    v_readfirstlane_b32 s28, v8")
        decode(28)
        e("    s_cmp_lt_u32 s28, s31")
        e("    s_cbranch_scc1 L_step")
        e("    s_memrealtime s[44:45]")
        e(f"    s_and_b32 s34, s33, {M-1}")
        e("    s_waitcnt lgkmcnt(0)")
        e("    s_sub_u32 s54, s44, s40                ; now")
        e(f"    s_cmp_lg_u32 s34, {sub}")
        e("    s_cbranch_scc1 L_nocons")
        e(f"    s_cmp_lt_u32 s33, {M}")
        e("    s_cbranch_scc1 L_nocons")
        e("    s_waitcnt vmcnt(0)")
        e("    v_subrev_u32 v12, s40, v12")
        if trace:
            e("    v_cmp_lt_u32 vcc, s55, v12")
            e("    s_nop 1")
            e("    s_bcnt1_i32_b64 s42, vcc")
        e("    v_min_u32 v12, s55, v12")
        e("    s_nop 1")
        for d in (1, 2, 4, 8):
            if d < NR:
                e(f"    v_add_u32_dpp v12, v12, v12 row_ror:{d} row_mask:0xf bank_mask:0xf")
                e("    s_nop 1")
        e("    v_readfirstlane_b32 s38, v12")
        e(f"    s_lshr_b32 s38, s38, {NR.bit_length()-1}")
        e("    s_sub_u32 s35, s59, s38")
        e("    s_sub_u32 s39, s38, s52")
        e("    s_mov_b32 s52, s38")
        e(f"    s_sub_u32 s56, s33, {M + sub}")
        e(f"    s_max_u32 s56, s56, {est}")
        e("    s_sub_u32 s38, s39, s53")
        if pc:
            e(f"    s_max_i32 s38, s38, {-pc}")
            e(f"    s_min_i32 s38, s38, {pc}")
            e(f"    s_add_u32 s38, s38, {1 << (psh - 1)}")
        e(f"    s_ashr_i32 s38, s38, {psh}")
        e("    s_add_u32 s38, s38, s53")
        e(f"    s_cmp_lt_u32 s33, {3*M}")
        e("    s_cselect_b32 s53, s53, s38")
        e("L_nocons:")
        e(f"    s_cmp_lt_u32 s33, {M + sub}")
        e("    s_cbranch_scc1 L_noctl")
        e("    s_sub_u32 s38, s33, s56")
        e("    s_mul_i32 s38, s38, s53")
        e(f"    s_lshr_b32 s38, s38, {lM}")
        e("    s_add_u32 s38, s38, s52")
        e("    s_sub_u32 s38, s54, s38")
        if skip:
            e(f"    s_mul_i32 s39, s57, {BT}")
            if rob:
                e("    s_min_i32 s36, s35, s38")
                e("    s_sub_u32 s36, s36, s39")
            e("    s_sub_u32 s39, s38, s39")
            e(f"    s_cmp_gt_i32 s{36 if rob else 39}, {up}")
            e("    s_addc_u32 s57, s57, 0")
            e(f"    s_cmp_lt_i32 s39, {-dn}")
            e("    s_subb_u32 s57, s57, 0")
            e("    s_max_i32 s57, s57, 0")
            e("    s_min_i32 s57, s57, 15")
            e("    v_mov_b32 v8, s57")
            e("    ds_write_b32 v7, v8 offset:28")
        if knee:
            e(f"    s_sub_u32 s39, s38, {knee}")
            e(f"    s_ashr_i32 s39, s39, {ksh}")
            e(f"    s_add_u32 s39, s39, {knee}")
            e("    s_min_i32 s38, s38, s39")
        e(f"    s_add_u32 s38, s38, {1 << (sh-1)}")
        e(f"    s_ashr_i32 s38, s38, {sh}")
        e(f"    s_add_u32 s38, s38, {mid}")
        e(f"    s_max_i32 s38, s38, {wmin}")
        e(f"    s_min_i32 s38, s38, {wmax}")
        e("    s_lshl_b32 s39, s38, 18")
        e("    s_or_b32 s38, s38, s39")
        e("    s_and_b32 s38, s38, 0xc0000f")
        e("    v_mov_b32 v8, s38")
        e("    ds_write_b32 v7, v8 offset:24")
        if trace:
            e(f"    s_cmp_lg_u32 s34, {sub}")
            e("    s_cbranch_scc1 L_noctl")
            e(f"    s_lshr_b32 s43, s33, {lM}")
            e("    s_lshr_b32 s39, s39, 18")
            e("    s_mov_b32 m0, s43")
            e("    v_writelane_b32 v20, s54, m0")
            e("    v_writelane_b32 v21, s52, m0")
            e("    v_writelane_b32 v22, s42, m0")
            e("    v_writelane_b32 v23, s39, m0")
        e("L_noctl:")
        e(f"    s_cmp_eq_u32 s33, {est}")
        e("    s_cselect_b32 s34, 0, s34")
        e("    s_cmp_lg_u32 s34, 0")
        e("    s_cbranch_scc1 L_noep")
        e("    s_mov_b32 s59, s55")
        e("    s_mov_b32 s55, s54")
        e(f"    s_cmp_ge_u32 s2, {NR}")
        e("    s_cbranch_scc1 L_norep")
        e("    v_mov_b32 v10, s44")
        e("    v_mov_b32 v11, s44")
        e("    v_lshl_add_u32 v15, v4, 3, s58")
        e("    global_store_dwordx2 v15, v[10:11], s[50:51] sc0 sc1")
        e(f"    s_add_u32 s58, s58, {STR*NR}")
        e("L_norep:")
        e(f"    s_cmp_eq_u32 s33, {est}")
        e("    s_cbranch_scc1 L_noep")
        e("    global_load_dword v12, v9, s[50:51] sc0 sc1")
        e(f"    v_add_u32 v9, {STR*NR}, v9")
        e("L_noep:")
        e(f"    s_add_u32 s31, s31, {9*sub}")
        e(f"    s_add_u32 s33, s33, {sub}")
        e("    s_cmp_lt_u32 s33, 252")
        e("    s_cbranch_scc1 L_step")
    elif ctl == 4:
        lM = M.bit_length() - 1
        e("    s_load_dwordx2 s[50:51], s[0:1], 56    ; ws")
        e("    s_memrealtime s[40:41]")
        e(f"    v_and_b32 v9, {NR-1}, v0")
        e(f"    v_mul_u32_u24 v9, {STR}, v9")
        e(f"    v_add_u32 v9, {WSB}, v9")
        e(f"    s_mul_i32 s58, s2, {STR}")
        e(f"    s_add_u32 s58, s58, {WSB + STR*NR}")
        e(f"    s_mov_b32 s31, {9*M}")
        e(f"    s_mov_b32 s33, {M}")
        e("    s_mov_b32 s52, 0")
        e("    s_mov_b32 s53, 0")
        e("    s_mov_b32 s56, 0")
        e("    s_mov_b32 s57, 0")
        e("    s_mov_b32 s55, 0")
        e("    s_mov_b32 s35, 0")
        e(f"    s_mov_b64 exec, {(1 << NR) - 1:#x}" if NR == 16 else "    s_mov_b32 exec_hi, 0")
        e("    s_and_b32 s46, s2, 7")
        e("    s_add_u32 s47, s46, 16")
        e("    s_mov_b32 s48, 0")
        e("    s_mov_b32 s49, 0")
        e("    s_waitcnt lgkmcnt(0)")
        e("    s_sub_u32 s40, s40, 300")
        e("L_step:")
        e("    ds_read_b32 v8, v7")
        e("    s_waitcnt lgkmcnt(0)")
        e("    v_readfirstlane_b32 s28, v8")
        decode(28)
        e("    s_cmp_lt_u32 s28, s31")
        e("    s_cbranch_scc1 L_step")
        e("    s_memrealtime s[44:45]")
        e(f"    s_and_b32 s34, s33, {M-1}")
        e("    s_waitcnt lgkmcnt(0)")
        e("    s_sub_u32 s54, s44, s40                ; now")
        e(f"    s_cmp_lg_u32 s34, {sub}")
        e("    s_cbranch_scc1 L_nocons")
        e(f"    s_cmp_lt_u32 s33, {2*M}")
        e("    s_cbranch_scc1 L_nocons")
        e("    s_waitcnt vmcnt(0)")
        e("    v_subrev_u32 v12, s40, v12")
        if trace:
            e("    v_cmp_lt_u32 vcc, s55, v12")
            e("    s_nop 1")
            e("    s_bcnt1_i32_b64 s42, vcc")
        e("    v_min_u32 v12, s55, v12")
        e("    s_nop 1")
        e("    v_add_u32_dpp v12, v12, v12 row_ror:8 row_mask:0xf bank_mask:0xf")
        e("    s_nop 1")
        e("    v_readlane_b32 s48, v12, s46")
        if NR == 32:
            e("    v_readlane_b32 s49, v12, s47")
        for d in (1, 2, 4):
            e(f"    v_add_u32_dpp v12, v12, v12 row_ror:{d} row_mask:0xf bank_mask:0xf")
            e("    s_nop 1")
        e("    v_readlane_b32 s38, v12, 0")
        if NR == 32:
            e("    v_readlane_b32 s39, v12, 16")
            e("    s_add_u32 s48, s48, s49")
            e("    s_add_u32 s38, s38, s39")
        e(f"    s_lshr_b32 s38, s38, {NR.bit_length()-1}")
        e(f"    s_lshr_b32 s48, s48, {NR.bit_length()-4}")
        e("    s_sub_u32 s48, s48, s38")
        e(f"    s_max_i32 s49, s48, {-glo}")
        e(f"    s_min_i32 s49, s49, {ghi}")
        e("    s_sub_u32 s48, s48, s49")
        e("    s_sub_u32 s35, s59, s38")
        e("    s_sub_u32 s39, s38, s52")
        e("    s_mov_b32 s52, s38")
        e(f"    s_sub_u32 s56, s33, {M + sub}")
        e("    s_sub_u32 s38, s39, s53")
        if pc:
            e(f"    s_max_i32 s38, s38, {-pc}")
            e(f"    s_min_i32 s38, s38, {pc}")
            e(f"    s_add_u32 s38, s38, {1 << (psh - 1)}")
        e(f"    s_ashr_i32 s38, s38, {psh}")
        e("    s_add_u32 s38, s38, s53")
        e(f"    s_cmp_lt_u32 s33, {4*M}")
        e("    s_cselect_b32 s53, s39, s38")
        e("L_nocons:")
        e(f"    s_cmp_lt_u32 s33, {3*M + sub}")
        e("    s_cbranch_scc1 L_noctl")
        e("    s_sub_u32 s38, s33, s56")
        e("    s_mul_i32 s38, s38, s53")
        e(f"    s_lshr_b32 s38, s38, {lM}")
        e("    s_add_u32 s38, s38, s52")
        e("    s_sub_u32 s38, s54, s38")
        if skip:
            e(f"    s_mul_i32 s39, s57, {BT}")
            if rob:
                e("    s_min_i32 s36, s35, s38")
                e("    s_sub_u32 s36, s36, s39")
            e("    s_sub_u32 s39, s38, s39")
            e(f"    s_cmp_gt_i32 s{36 if rob else 39}, {up}")
            e("    s_addc_u32 s57, s57, 0")
            e(f"    s_cmp_lt_i32 s39, {-dn}")
            e("    s_subb_u32 s57, s57, 0")
            e("    s_max_i32 s57, s57, 0")
            e("    s_min_i32 s57, s57, 15")
            e("    v_mov_b32 v8, s57")
            e("    ds_write_b32 v7, v8 offset:28")
        if knee:
            e(f"    s_sub_u32 s39, s38, {knee}")
            e(f"    s_ashr_i32 s39, s39, {ksh}")
            e(f"    s_add_u32 s39, s39, {knee}")
            e("    s_min_i32 s38, s38, s39")
        e("    s_sub_u32 s38, s38, s48")
        e(f"    s_add_u32 s38, s38, {1 << (sh-1)}")
        e(f"    s_ashr_i32 s38, s38, {sh}")
        e(f"    s_add_u32 s38, s38, {mid}")
        e(f"    s_max_i32 s38, s38, {wmin}")
        e(f"    s_min_i32 s38, s38, {wmax}")
        e("    s_lshl_b32 s39, s38, 18")
        e("    s_or_b32 s38, s38, s39")
        e("    s_and_b32 s38, s38, 0xc0000f")
        e("    v_mov_b32 v8, s38")
        e("    ds_write_b32 v7, v8 offset:24")
        if trace:
            e(f"    s_cmp_lg_u32 s34, {sub}")
            e("    s_cbranch_scc1 L_noctl")
            e(f"    s_lshr_b32 s43, s33, {lM}")
            e("    s_lshr_b32 s39, s39, 18")
            e("    s_mov_b32 m0, s43")
            e("    v_writelane_b32 v20, s54, m0")
            e("    v_writelane_b32 v21, s52, m0")
            e("    v_writelane_b32 v22, s42, m0")
            e("    v_writelane_b32 v23, s39, m0")
        e("L_noctl:")
        e("    s_cmp_lg_u32 s34, 0")
        e("    s_cbranch_scc1 L_noep")
        e("    s_mov_b32 s59, s55")
        e("    s_mov_b32 s55, s54")
        e(f"    s_cmp_ge_u32 s2, {NR}")
        e("    s_cbranch_scc1 L_norep")
        e("    v_mov_b32 v10, s44")
        e("    v_mov_b32 v11, s44")
        e("    v_lshl_add_u32 v15, v4, 3, s58")
        e("    global_store_dwordx2 v15, v[10:11], s[50:51] sc0 sc1")
        e(f"    s_add_u32 s58, s58, {STR*NR}")
        e("L_norep:")
        e(f"    s_cmp_eq_u32 s33, {M}")
        e("    s_cbranch_scc1 L_nold")
        e("    global_load_dword v12, v9, s[50:51] sc0 sc1")
        e("L_nold:")
        e(f"    v_add_u32 v9, {STR*NR}, v9")
        e("L_noep:")
        e(f"    s_add_u32 s31, s31, {9*sub}")
        e(f"    s_add_u32 s33, s33, {sub}")
        e("    s_cmp_lt_u32 s33, 252")
        e("    s_cbranch_scc1 L_step")
    elif ctl == 2:
        lM = M.bit_length() - 1
        e("    s_load_dwordx2 s[50:51], s[0:1], 56    ; ws")
        e("    s_memrealtime s[40:41]")
        e(f"    v_and_b32 v9, {NR-1}, v0")
        e(f"    v_mul_u32_u24 v9, {STR}, v9")
        e(f"    v_add_u32 v9, {WSB}, v9")
        e(f"    s_mul_i32 s58, s2, {STR}")
        e(f"    s_add_u32 s58, s58, {WSB + STR*NR}")
        e(f"    s_mov_b32 s31, {9*M}")
        e(f"    s_mov_b32 s33, {M}")
        e("    s_mov_b32 s52, 0")
        e("    s_mov_b32 s53, 0")
        e("    s_mov_b32 s56, 0")
        e("    s_mov_b32 s57, 0")
        e("    s_mov_b32 s55, 0")
        e("    s_mov_b32 s35, 0")
        e("    s_mov_b64 exec, 0xffff")
        e("    s_waitcnt lgkmcnt(0)")
        e("    s_sub_u32 s40, s40, 300")
        e("L_step:")
        e("    ds_read_b32 v8, v7")
        e("    s_waitcnt lgkmcnt(0)")
        e("    v_readfirstlane_b32 s28, v8")
        decode(28)
        e("    s_cmp_lt_u32 s28, s31")
        e("    s_cbranch_scc1 L_step")
        e("    s_memrealtime s[44:45]")
        e(f"    s_and_b32 s34, s33, {M-1}")
        e("    s_waitcnt lgkmcnt(0)")
        e("    s_sub_u32 s54, s44, s40                ; now")
        e(f"    s_cmp_lg_u32 s34, {sub}")
        e("    s_cbranch_scc1 L_nocons")
        e(f"    s_cmp_lt_u32 s33, {2*M}")
        e("    s_cbranch_scc1 L_nocons")
        e("    s_waitcnt vmcnt(0)")
        e("    v_subrev_u32 v12, s40, v12")
        if trace:
            e("    v_cmp_lt_u32 vcc, s55, v12")
            e("    s_nop 1")
            e("    s_bcnt1_i32_b64 s42, vcc")
        e("    v_min_u32 v12, s55, v12")
        e("    s_nop 1")
        for d in (1, 2, 4, 8):
            if d < NR:
                e(f"    v_add_u32_dpp v12, v12, v12 row_ror:{d} row_mask:0xf bank_mask:0xf")
                e("    s_nop 1")
        e("    v_readfirstlane_b32 s38, v12")
        e(f"    s_lshr_b32 s38, s38, {NR.bit_length()-1}")
        e("    s_sub_u32 s35, s59, s38")
        e("    s_sub_u32 s39, s38, s52")
        e("    s_mov_b32 s52, s38")
        e(f"    s_sub_u32 s56, s33, {M + sub}")
        e("    s_sub_u32 s38, s39, s53")
        if pc:
            e(f"    s_max_i32 s38, s38, {-pc}")
            e(f"    s_min_i32 s38, s38, {pc}")
            e(f"    s_add_u32 s38, s38, {1 << (psh - 1)}")
        e(f"    s_ashr_i32 s38, s38, {psh}")
        e("    s_add_u32 s38, s38, s53")
        e(f"    s_cmp_lt_u32 s33, {4*M}")
        e("    s_cselect_b32 s53, s39, s38")
        e("L_nocons:")
        e(f"    s_cmp_lt_u32 s33, {3*M + sub}")
        e("    s_cbranch_scc1 L_noctl")
        e("    s_sub_u32 s38, s33, s56")
        e("    s_mul_i32 s38, s38, s53")
        e(f"    s_lshr_b32 s38, s38, {lM}")
        e("    s_add_u32 s38, s38, s52")
        e("    s_sub_u32 s38, s54, s38")
        if skip:
            e(f"    s_mul_i32 s39, s57, {BT}")
            if rob:
                e("    s_min_i32 s36, s35, s38")
                e("    s_sub_u32 s36, s36, s39")
            e("    s_sub_u32 s39, s38, s39")
            e(f"    s_cmp_gt_i32 s{36 if rob else 39}, {up}")
            e("    s_addc_u32 s57, s57, 0")
            e(f"    s_cmp_lt_i32 s39, {-dn}")
            e("    s_subb_u32 s57, s57, 0")
            e("    s_max_i32 s57, s57, 0")
            e("    s_min_i32 s57, s57, 15")
            e("    v_mov_b32 v8, s57")
            e("    ds_write_b32 v7, v8 offset:28")
        if knee:
            e(f"    s_sub_u32 s39, s38, {knee}")
            e(f"    s_ashr_i32 s39, s39, {ksh}")
            e(f"    s_add_u32 s39, s39, {knee}")
            e("    s_min_i32 s38, s38, s39")
        e(f"    s_add_u32 s38, s38, {1 << (sh-1)}")
        e(f"    s_ashr_i32 s38, s38, {sh}")
        e(f"    s_add_u32 s38, s38, {mid}")
        e(f"    s_max_i32 s38, s38, {wmin}")
        e(f"    s_min_i32 s38, s38, {wmax}")
        e("    s_lshl_b32 s39, s38, 18")
        e("    s_or_b32 s38, s38, s39")
        e("    s_and_b32 s38, s38, 0xc0000f")
        e("    v_mov_b32 v8, s38")
        e("    ds_write_b32 v7, v8 offset:24")
        if trace:
            e(f"    s_cmp_lg_u32 s34, {sub}")
            e("    s_cbranch_scc1 L_noctl")
            e(f"    s_lshr_b32 s43, s33, {lM}")
            e("    s_lshr_b32 s39, s39, 18")
            e("    s_mov_b32 m0, s43")
            e("    v_writelane_b32 v20, s54, m0")
            e("    v_writelane_b32 v21, s52, m0")
            e("    v_writelane_b32 v22, s42, m0")
            e("    v_writelane_b32 v23, s39, m0")
        e("L_noctl:")
        e("    s_cmp_lg_u32 s34, 0")
        e("    s_cbranch_scc1 L_noep")
        e("    s_mov_b32 s59, s55")
        e("    s_mov_b32 s55, s54")
        e(f"    s_cmp_ge_u32 s2, {NR}")
        e("    s_cbranch_scc1 L_norep")
        e("    v_mov_b32 v10, s44")
        e("    v_mov_b32 v11, s44")
        e("    v_lshl_add_u32 v15, v4, 3, s58")
        e("    global_store_dwordx2 v15, v[10:11], s[50:51] sc0 sc1")
        e(f"    s_add_u32 s58, s58, {STR*NR}")
        e("L_norep:")
        e(f"    s_cmp_eq_u32 s33, {M}")
        e("    s_cbranch_scc1 L_nold")
        e("    global_load_dword v12, v9, s[50:51] sc0 sc1")
        e("L_nold:")
        e(f"    v_add_u32 v9, {STR*NR}, v9")
        e("L_noep:")
        e(f"    s_add_u32 s31, s31, {9*sub}")
        e(f"    s_add_u32 s33, s33, {sub}")
        e("    s_cmp_lt_u32 s33, 252")
        e("    s_cbranch_scc1 L_step")
    elif ctl:
        e("    s_load_dwordx2 s[50:51], s[0:1], 56    ; ws")
        e("    s_memrealtime s[40:41]")
        e(f"    v_and_b32 v9, {NR-1}, v0")
        e(f"    v_mul_u32_u24 v9, {STR}, v9")
        e(f"    v_add_u32 v9, {WSB}, v9")
        e(f"    s_mul_i32 s58, s2, {STR}")
        e(f"    s_add_u32 s58, s58, {WSB + STR*NR}")
        e(f"    s_mov_b32 s31, {9*M}")
        e("    s_mov_b32 s54, 0")
        e("    s_mov_b64 exec, 0xffff")
        e("L_epoch:")
        e("    ds_read_b32 v8, v7")
        e("    s_waitcnt lgkmcnt(0)")
        e("    v_readfirstlane_b32 s28, v8")
        decode(28)
        e("    s_cmp_lt_u32 s28, s31")
        e("    s_cbranch_scc1 L_epoch")
        e("    s_memrealtime s[44:45]")
        e("    s_mov_b32 s55, s54")
        e(f"    s_cmp_eq_u32 s31, {9*M}")
        e("    s_cbranch_scc1 L_first")
        e("    global_load_dword v12, v9, s[50:51] sc0 sc1")
        e("L_first:")
        e(f"    v_add_u32 v9, {STR*NR}, v9")
        e("    s_waitcnt lgkmcnt(0)")
        e("    s_sub_u32 s54, s44, s40")
        e(f"    s_cmp_ge_u32 s2, {NR}")
        e("    s_cbranch_scc1 L_norep")
        e("    v_mov_b32 v10, s44")
        e("    v_mov_b32 v11, s44")
        e("    v_lshl_add_u32 v15, v4, 3, s58")
        e("    global_store_dwordx2 v15, v[10:11], s[50:51] sc0 sc1")
        e(f"    s_add_u32 s58, s58, {STR*NR}")
        e("    s_waitcnt vmcnt(1)")
        e("    s_branch L_rep")
        e("L_norep:")
        e("    s_waitcnt vmcnt(0)")
        e("L_rep:")
        e(f"    s_cmp_eq_u32 s31, {9*M}")
        e("    s_cbranch_scc1 L_next")
        e("    v_subrev_u32 v12, s40, v12")
        if vo:
            e("    v_cmp_ge_u32 vcc, s54, v12")
            e("    v_mov_b32 v13, s55")
            e("    s_nop 0")
            e("    v_cndmask_b32 v12, v13, v12, vcc")
        else:
            if trace:
                e("    v_cmp_lt_u32 vcc, s54, v12")
                e("    s_nop 1")
                e("    s_bcnt1_i32_b64 s42, vcc")
            e("    v_min_u32 v12, s54, v12")
        e("    s_nop 1")
        for d in (1, 2, 4, 8):
            if d < NR:
                e(f"    v_add_u32_dpp v12, v12, v12 row_ror:{d} row_mask:0xf bank_mask:0xf")
                e("    s_nop 1")
        e("    v_readfirstlane_b32 s38, v12")
        e(f"    s_lshr_b32 s38, s38, {NR.bit_length()-1}")
        e("    s_mov_b32 s52, s38")
        e("    s_sub_u32 s38, s55, s38")
        e(f"    s_add_u32 s38, s38, {1 << (sh-1)}")
        e(f"    s_ashr_i32 s38, s38, {sh}")
        e(f"    s_add_u32 s38, s38, {mid}")
        e(f"    s_max_i32 s38, s38, {wmin}")
        e(f"    s_min_i32 s38, s38, {wmax}")
        e("    s_lshl_b32 s39, s38, 18")
        e("    s_or_b32 s38, s38, s39")
        e("    s_and_b32 s38, s38, 0xc0000f")
        e("    v_mov_b32 v8, s38")
        e("    ds_write_b32 v7, v8 offset:24")
        if trace:
            e(f"    s_mul_i32 s43, s31, {(1 << 16) // (9*M) + 1}")
            e("    s_lshr_b32 s43, s43, 16")
            e("    s_lshr_b32 s39, s39, 18")
            e("    s_mov_b32 m0, s43")
            e("    v_writelane_b32 v20, s54, m0")
            e("    v_writelane_b32 v21, s52, m0")
            e("    v_writelane_b32 v22, s42, m0")
            e("    v_writelane_b32 v23, s39, m0")
        e("L_next:")
        e(f"    s_add_u32 s31, s31, {9*M}")
        e(f"    s_cmp_lt_u32 s31, {9*(256 - M)}")
        e("    s_cbranch_scc1 L_epoch")
    if trace:
        e("    s_mov_b64 exec, -1")
        e("    v_writelane_b32 v20, s40, 0")
        e("    v_and_b32 v0, 63, v0")
        e("    s_lshl_b32 s28, s2, 10")
        e(f"    s_add_u32 s28, s28, {8 << 20}")
        e("    v_lshl_add_u32 v24, v0, 4, s28")
        e("    global_store_dwordx4 v24, v[20:23], s[50:51]")
    e("    s_endpgm")
    e("L_consumer:")
    VA = 8
    VT = 14
    VE = 20
    VB = 24
    VACC = 40
    VQ = 56
    VP = 72
    VO = 76
    VX = 84
    NV = 100
    e("    s_load_dwordx2 s[4:5], s[0:1], 0       ; q")
    e("    s_load_dwordx2 s[14:15], s[0:1], 40    ; out")
    e("    s_lshr_b32 s3, s3, 7                   ; consumer 0/1")
    e("    v_and_b32 v0, 63, v0")
    e("    v_bfe_u32 v6, v0, 2, 2                 ; rr")
    e("    v_lshl_add_u32 v12, v5, 3, v6")
    e("    v_and_b32 v13, 1, v5")
    e("    v_lshl_add_u32 v6, v13, 2, v6")
    e("    s_lshl_b32 s28, s3, 2")
    e("    v_xor_b32 v6, s28, v6")
    e("    v_lshlrev_b32 v6, 5, v6")
    e("    v_lshl_add_u32 v6, v12, 8, v6")
    e("    v_and_b32 v13, 3, v0")
    e(f"    v_lshl_add_u32 v{VA}, v13, 3, v6")
    for j in range(1, 4):
        e(f"    v_xor_b32 v{VA+j}, {32*j}, v{VA}")
    e(f"    v_lshlrev_b32 v{VA+4}, 4, v0")
    e(f"    v_add_u32 v{VA+4}, 8192, v{VA+4}")
    e("    v_add_u32 v3, s28, v7")
    e("    v_xor_b32 v2, 4, v3")
    e("    v_lshlrev_b32 v1, 8, v4")
    e("    v_lshl_add_u32 v1, v5, 3, v1")
    e("    s_lshl_b32 s28, s3, 7")
    e("    v_add_u32 v1, s28, v1")
    blockid(28)
    e("    s_lshl_b32 s28, s28, 12")
    e("    s_mov_b32 s18, 2048")
    e("    s_mov_b32 s19, 0x00020000")
    e("    s_mov_b32 s22, 2048")
    e("    s_mov_b32 s23, 0x00020000")
    e("    s_mov_b32 s31, 0                       ; chunk")
    e("    s_mov_b32 s32, 9")
    e("    s_mov_b32 s33, 0")
    e("    s_mov_b32 s34, 0")
    e("    s_waitcnt lgkmcnt(0)")
    e("    s_add_u32 s16, s4, s28")
    e("    s_addc_u32 s17, s5, 0")
    e("    s_add_u32 s20, s16, 2048")
    e("    s_addc_u32 s21, s17, 0")
    for j in range(4):
        off = f" offset:{32*j}" if j else ""
        e(f"    buffer_load_dwordx2 v[{VQ+2*j}:{VQ+2*j+1}], v1, s[16:19], 0 offen{off}")
    for j in range(4):
        off = f" offset:{32*j}" if j else ""
        e(f"    buffer_load_dwordx2 v[{VQ+8+2*j}:{VQ+8+2*j+1}], v1, s[20:23], 0 offen{off}")
    e("    s_add_u32 s16, s14, s28")
    e("    s_addc_u32 s17, s15, 0")
    e("    s_add_u32 s20, s16, 2048")
    e("    s_addc_u32 s21, s17, 0")


    def seg(tag, isK):
        for i in range(16):
            e(f"    v_mov_b32 v{VACC+i}, 0")
        e(f"L_{tag}:")
        for j in range(5):
            e(f"    v_add_u32 v{VT+j}, s34, v{VA+j}")
        e("    s_add_u32 s31, s31, 1")
        e("    v_mov_b32 v13, s31")
        e("    s_cmp_ge_u32 s33, s32")
        e(f"    s_cbranch_scc1 L_{tag}_go")
        e(f"L_{tag}_poll:")
        e("    ds_read_b32 v6, v7")
        e("    s_waitcnt lgkmcnt(0)")
        e("    v_readfirstlane_b32 s33, v6")
        decode(33)
        e("    s_cmp_lt_u32 s33, s32")
        e(f"    s_cbranch_scc1 L_{tag}_poll")
        e(f"L_{tag}_go:")
        e(f"    ds_read_b128 v[{VE}:{VE+3}], v{VT+4}")
        for j in range(4):
            e(f"    ds_read_b64_tr_b16 v[{VB+4*j}:{VB+4*j+1}], v{VT+j}")
            e(f"    ds_read_b64_tr_b16 v[{VB+4*j+2}:{VB+4*j+3}], v{VT+j} offset:1024")
        e("    ds_write_b32 v3, v13 offset:16")
        e("    s_add_u32 s32, s32, 9")
        e(f"    s_add_u32 s34, s34, {SLOT}")
        e(f"    s_cmp_eq_u32 s34, {SLOT*S}")
        e("    s_cselect_b32 s34, 0, s34")
        e("    s_and_b32 s28, s31, 63")
        for j in range(4):
            e(f"    s_waitcnt lgkmcnt({7-2*j})")
            a = VACC + 4 * j
            t = VB + 4 * j
            if isK:
                e(f"    v_mfma_f32_16x16x32_bf16 v[{a}:{a+3}], v[{t}:{t+3}], v[{VE}:{VE+3}], v[{a}:{a+3}]")
            else:
                e(f"    v_mfma_f32_16x16x32_bf16 v[{a}:{a+3}], v[{VE}:{VE+3}], v[{t}:{t+3}], v[{a}:{a+3}]")
        e(f"    s_cbranch_scc1 L_{tag}")

    e("L_head:")
    seg("k", True)
    T = VX
    e("    s_waitcnt vmcnt(0)")
    e("    s_nop 5")
    for j in range(4):
        e(f"    v_cvt_pk_bf16_f32 v{T+2*j}, v{VACC+4*j}, v{VACC+4*j+1}")
        e(f"    v_cvt_pk_bf16_f32 v{T+2*j+1}, v{VACC+4*j+2}, v{VACC+4*j+3}")
    e("    s_lshl_b32 s28, s3, 10")
    e(f"    s_add_u32 s28, s28, {SCX - 8192}")
    e(f"    v_mfma_f32_16x16x32_bf16 v[{T+8}:{T+11}], v[{T}:{T+3}], v[{VQ}:{VQ+3}], 0")
    e(f"    v_mfma_f32_16x16x32_bf16 v[{T+8}:{T+11}], v[{T+4}:{T+7}], v[{VQ+4}:{VQ+7}], v[{T+8}:{T+11}]")
    e(f"    v_add_u32 v14, s28, v{VA+4}")
    e("    v_xor_b32 v15, 16, v0")
    e("    v_xor_b32 v16, 32, v0")
    e("    v_lshlrev_b32 v15, 2, v15")
    e("    v_lshlrev_b32 v16, 2, v16")
    e("    s_xor_b32 s29, s3, 1")
    e("    s_lshl_b32 s29, s29, 10")
    e(f"    s_add_u32 s29, s29, {SCX - 8192}")
    e(f"    v_add_u32 v17, s29, v{VA+4}")
    e(f"    ds_write_b128 v14, v[{T+8}:{T+11}]")
    e("    ds_write_b32 v3, v13 offset:32")
    for i in range(8):
        e(f"    v_mov_b32 v{VQ+i}, v{VQ+8+i}")
    e("L_scpoll:")
    e("    ds_read_b32 v6, v2 offset:32")
    e("    s_waitcnt lgkmcnt(0)")
    e("    v_readfirstlane_b32 s28, v6")
    e("    s_cmp_lt_u32 s28, s31")
    e("    s_cbranch_scc1 L_scpoll")
    e(f"    ds_read_b128 v[{T}:{T+3}], v17")
    e("    s_waitcnt lgkmcnt(0)")
    for i in range(4):
        e(f"    v_add_f32 v{T+i}, v{T+i}, v{T+8+i}")

    def rnd():
        e(f"    v_cvt_pk_bf16_f32 v{T+4}, v{T}, v{T+1}")
        e(f"    v_cvt_pk_bf16_f32 v{T+5}, v{T+2}, v{T+3}")
        e(f"    v_lshlrev_b32 v{T}, 16, v{T+4}")
        e(f"    v_and_b32 v{T+1}, 0xffff0000, v{T+4}")
        e(f"    v_lshlrev_b32 v{T+2}, 16, v{T+5}")
        e(f"    v_and_b32 v{T+3}, 0xffff0000, v{T+5}")
    rnd()
    for i in range(4):
        e(f"    v_mul_f32 v{T+i}, 0x3db504f3, v{T+i}      ; 128^-0.5")
    rnd()
    e(f"    v_max_f32 v{T+4}, v{T}, v{T+1}")
    e(f"    v_max3_f32 v{T+4}, v{T+2}, v{T+3}, v{T+4}")
    e(f"    ds_bpermute_b32 v{T+5}, v15, v{T+4}")
    e("    s_waitcnt lgkmcnt(0)")
    e(f"    v_max_f32 v{T+4}, v{T+4}, v{T+5}")
    e(f"    ds_bpermute_b32 v{T+5}, v16, v{T+4}")
    e("    s_waitcnt lgkmcnt(0)")
    e(f"    v_max_f32 v{T+4}, v{T+4}, v{T+5}")
    for i in range(4):
        e(f"    v_sub_f32 v{T+i}, v{T+i}, v{T+4}")
    for i in range(4):
        e(f"    v_mul_f32 v{T+i}, 0x3fb8aa3b, v{T+i}      ; log2(e)")
    for i in range(4):
        e(f"    v_exp_f32 v{T+i}, v{T+i}")
    e("    s_nop 0")
    e(f"    v_add_f32 v{T+4}, v{T}, v{T+1}")
    e(f"    v_add_f32 v{T+5}, v{T+2}, v{T+3}")
    e(f"    v_add_f32 v{T+4}, v{T+4}, v{T+5}")
    e(f"    ds_bpermute_b32 v{T+5}, v15, v{T+4}")
    e("    s_waitcnt lgkmcnt(0)")
    e(f"    v_add_f32 v{T+4}, v{T+4}, v{T+5}")
    e(f"    ds_bpermute_b32 v{T+5}, v16, v{T+4}")
    e("    s_waitcnt lgkmcnt(0)")
    e(f"    v_add_f32 v{T+4}, v{T+4}, v{T+5}")
    e(f"    v_rcp_f32 v{T+4}, v{T+4}")
    e("    s_nop 0")
    for i in range(4):
        e(f"    v_mul_f32 v{T+i}, v{T+i}, v{T+4}")
    e(f"    v_mov_b32 v{VP}, v{VP+2}")
    e(f"    v_mov_b32 v{VP+1}, v{VP+3}")
    e(f"    v_cvt_pk_bf16_f32 v{VP+2}, v{T}, v{T+1}")
    e(f"    v_cvt_pk_bf16_f32 v{VP+3}, v{T+2}, v{T+3}")
    e("    s_cmp_eq_u32 s31, 64")
    e("    s_cbranch_scc1 L_head")
    e("L_headv:")
    seg("v", False)
    e("    s_cmp_eq_u32 s31, 256")
    e("    s_nop 1")
    for j in range(4):
        e(f"    v_cvt_pk_bf16_f32 v{VB+2*j}, v{VACC+4*j}, v{VACC+4*j+1}")
        e(f"    v_cvt_pk_bf16_f32 v{VB+2*j+1}, v{VACC+4*j+2}, v{VACC+4*j+3}")
    for j in range(4):
        e(f"    v_mfma_f32_16x16x16_bf16 v[{T+4*j}:{T+4*j+3}], v[{VB+2*j}:{VB+2*j+1}], v[{VP}:{VP+1}], 0")
    e("    s_nop 4")
    for j in range(4):
        e(f"    v_cvt_pk_bf16_f32 v{VB+2*j}, v{T+4*j}, v{T+4*j+1}")
        e(f"    v_cvt_pk_bf16_f32 v{VB+2*j+1}, v{T+4*j+2}, v{T+4*j+3}")
        off = f" offset:{32*j}" if j else ""
        e(f"    buffer_store_dwordx2 v[{VB+2*j}:{VB+2*j+1}], v1, s[16:19], 0 offen{off}{sfl}")
    e("    s_cbranch_scc1 L_fin")
    e("    s_mov_b64 s[16:17], s[20:21]")
    e(f"    v_mov_b32 v{VP}, v{VP+2}")
    e(f"    v_mov_b32 v{VP+1}, v{VP+3}")
    e("    s_branch L_headv")
    e("L_fin:")
    if stamp and probe:
        e("    s_endpgm")
    e("L_exit:")
    if spin:
        e("L_spin:")
        e("    s_memrealtime s[62:63]")
        e("    s_waitcnt lgkmcnt(0)")
        e("    s_sub_u32 s47, s62, s60")
        e(f"    s_cmp_lt_u32 s47, {spin}")
        e("    s_cbranch_scc1 L_spin")
    if stamp:
        if stamp == 2:
            e("    s_waitcnt vmcnt(0)")
        e("    s_memrealtime s[62:63]")
        e("    s_load_dwordx2 s[50:51], s[0:1], 56    ; ws")
        e("    s_lshl_b32 s47, s2, 1" if not probe else "    s_mov_b32 s47, s2")
        e("    s_add_u32 s46, s3, s47")
        e("    s_lshl_b32 s46, s46, 4")
        e("    s_waitcnt vmcnt(0) lgkmcnt(0)")
        e("    s_getreg_b32 s61, hwreg(HW_REG_XCC_ID)")
        e("    v_mov_b32 v12, s60" if not probe else "    v_mov_b32 v12, s56")
        e("    v_mov_b32 v13, s61")
        e("    v_mov_b32 v14, s62" if not probe else "    v_mov_b32 v14, s60")
        e("    v_mov_b32 v15, 0")
        e("    v_mov_b32 v16, s46")
        e("    global_store_dwordx4 v16, v[12:15], s[50:51]")
    e("L_done:")
    e("    s_endpgm")
    e('.section .rodata,"a"')
    e(".p2align 6")
    e(f".amdhsa_kernel {NAME}_kernel")
    e(f"  .amdhsa_next_free_vgpr {NV}")
    e("  .amdhsa_next_free_sgpr 64")
    e(f"  .amdhsa_accum_offset {(NV+3)//4*4}")
    e("  .amdhsa_group_segment_fixed_size 0")
    e("  .amdhsa_kernarg_size 64")
    e("  .amdhsa_user_sgpr_count 2")
    e("  .amdhsa_user_sgpr_kernarg_segment_ptr 1")
    e("  .amdhsa_system_sgpr_workgroup_id_x 1")
    e("  .amdhsa_float_denorm_mode_32 3")
    e(".end_amdhsa_kernel")
    return "\n".join(L) + "\n"


if __name__ == "__main__":
    import sys
    kw = {}
    out = "/dev/stdout"
    for a in sys.argv[1:]:
        k, v = a.split("=")
        if k == "o":
            out = v
            continue
        try:
            v = int(v)
        except ValueError:
            pass
        kw[k] = v
    open(out, "w").write(gen(**kw))
```

```python
NAME = "standalone__low_rank_proj_linformer__sampling"

HEADER = """; Kernarg layout for this problem (64 bytes, ptrs only, base s[0:1]):
"""


def enc(w):
    return (w & 15) | ((w >> 4) << 22)


def gen(pat="x5789a46", mid=24, wmin=21, wmax=38, sh=3, M=8, NR=8, ctl=2, stamp=0,
        flags="nt", sflags="", spin=0, probe=0, S=16, w0=0, we=0, ne=0, pf=1, vo=0, al=1, NB=3, wr=8, sub=2, psh=3, trace=0,
        w='25.22.23.20.21.24.26.27', x11='x7', x13='x', P0=214, est=4, glo=24, ghi=32, knee=32, ksh=1, wi=0, skip=1, up=80, dn=59, BT=107, rob=1, pc=12, det=1, tlb=0, eb=0, ebw=30, wide=1, late=248, s0flags=None, endbar=1, ramp=0, rsh=7, rend=128):
    L = []
    e = L.append
    pos = [int(ch, 16) + 8 for ch in pat[1:]]
    assert sorted(pos) == list(range(12, 19))
    i2, cpos = pos[0], pos[1:]
    SLOT = 9216
    FLG = S * SLOT
    SCX = FLG + 256
    LDS = SCX + 2048
    STR = 4352
    WSB = 1 << 20
    U = 4
    fl = f" {flags}" if flags else ""
    sfl = f" {sflags.replace('+', ' ')}" if sflags else ""
    s0fl = sfl if s0flags is None else (f" {s0flags.replace('+', ' ')}" if s0flags != "p" else "")
    if not w0:
        w0 = wi or mid
    e(HEADER.rstrip())
    e(f"; @launch grid=(256,1,1) block=(256,1,1) lds={LDS}")
    e('.amdgcn_target "amdgcn-amd-amdhsa--gfx950"')
    e(".text")
    e(f".globl {NAME}_kernel")
    if al:
        e(".p2align 12")
    if al == 2:
        e(".fill 832, 4, 0xBF800000")
    e(".p2align 8")
    e(f".type {NAME}_kernel,@function")
    e(f"{NAME}_kernel:")
    if spin or stamp:
        e("    s_memrealtime s[60:61]")
    if stamp and probe:
        e("    s_memrealtime s[56:57]")
    e("    s_load_dwordx8 s[8:15], s[0:1], 8      ; k v e f")
    e("    v_readfirstlane_b32 s3, v0")
    e("    s_cmp_ge_u32 s2, 256")
    e("    s_cbranch_scc1 L_done")
    e("    v_and_b32 v4, 15, v0")
    e("    v_bfe_u32 v5, v0, 4, 2")
    e(f"    v_mov_b32 v7, {FLG}")

    def blockid(d):
        wb = [int(t) - 20 for t in str(w).split(".")]
        b = 0
        first = True
        while b < 8:
            n = 1
            while b + n < 8 and wb[b + n] == wb[b] + n:
                n += 1
            t = d if first else 29
            if wb[b] == b:
                e(f"    s_and_b32 s{t}, s2, {((1 << n) - 1) << b}")
            else:
                e(f"    s_bfe_u32 s{t}, s2, {(n << 16) | b:#x}")
                if wb[b]:
                    e(f"    s_lshl_b32 s{t}, s{t}, {wb[b]}")
            if not first:
                e(f"    s_or_b32 s{d}, s{d}, s29")
            first = False
            b += n
    e("    s_cmp_eq_u32 s3, 0")
    e("    s_cbranch_scc1 L_loader")
    e("    s_memrealtime s[40:41]")
    e("    v_mov_b32 v8, 0")
    e("    v_mov_b32 v9, 0")
    e(f"    v_mov_b32 v10, {enc(wi or mid)}")
    e("    ds_write_b32 v7, v8")
    e("    v_mov_b32 v11, 0")
    e("    ds_write_b128 v7, v[8:11] offset:16")
    e("    ds_write_b64 v7, v[8:9] offset:32")
    e("    v_and_b32 v13, 31, v0")
    e("    s_bfe_u32 s29, s2, 0x40003")
    e("    s_lshl_b32 s29, s29, 7")
    e("    v_lshl_add_u32 v13, v13, 11, s29")
    e("    s_bitcmp1_b32 s2, 7")
    e("    s_waitcnt lgkmcnt(0)")
    e("    s_cselect_b64 s[20:21], s[14:15], s[12:13]")
    e("    s_cmp_lg_u32 s3, 192")
    e("    s_cbranch_scc1 L_meet")
    if pf:
        e("    global_load_dword v14, v13, s[20:21]")
    e("L_meet:")
    e("    s_barrier")
    e("    s_cbranch_scc1 L_consumer")
    e("    s_branch L_control")
    VD = 16
    VF = 32
    e("L_loader:")
    assert i2 == 13

    def parity(d, bits):
        m = sum(1 << int(c) for c in bits[1:])
        if not m:
            e(f"    s_mov_b32 s{d}, 0")
        elif len(bits) == 2:
            e(f"    s_bfe_u32 s{d}, s2, {(1 << 16) | int(bits[1]):#x}")
        else:
            e(f"    s_and_b32 s{d}, s2, {m}")
            e(f"    s_bcnt1_i32_b32 s{d}, s{d}")
            e(f"    s_and_b32 s{d}, s{d}, 1")
    parity(24, x11)
    parity(25, x13)
    e("    v_lshlrev_b32 v6, 1, v5")
    e("    v_xor_b32 v6, v6, v4")
    e("    v_lshlrev_b32 v6, 4, v6")
    e("    v_lshl_add_u32 v6, v5, 8, v6")
    e("    s_lshl_b32 s26, s25, 13")
    e("    s_lshl_b32 s27, s24, 11")
    e("    s_add_u32 s26, s26, 2048")
    e("    s_add_u32 s30, s26, s27")
    e("    s_sub_u32 s26, s26, s27")
    e(f"    v_add_u32 v{VD}, s30, v6")
    e("    v_xor_b32 v6, 0x80, v6")
    e(f"    v_add_u32 v{VD+1}, s26, v6")
    e(f"    v_xor_b32 v{VD+2}, 8192, v{VD}")
    e(f"    v_xor_b32 v{VD+3}, 8192, v{VD+1}")
    blockid(28)
    e("    s_lshl_b32 s28, s28, 20")
    e("    s_sub_u32 s28, s28, 2048")
    e("    s_subb_u32 s27, 0, 0")
    e("    s_mov_b32 s18, 0x100800")
    e("    s_mov_b32 s19, 0x00020000")
    e("    s_mov_b32 m0, 0")

    def doff(n):
        return (((n >> 1) & 1) << cpos[0]) + ((n >> 2) << cpos[1])

    def dtab(n):
        return [f"v_add_u32 v{VD+2*n}, {doff(n)}, v{VD+2*(n&1)}", f"v_add_u32 v{VD+2*n+1}, {doff(n)}, v{VD+2*(n&1)+1}"]

    e("    s_lshl_b32 s25, s25, 1")
    e("    s_or_b32 s24, s24, s25")
    e("    v_xor_b32 v5, s24, v5")
    e(f"    v_lshlrev_b32 v{VF}, 12, v4")
    e("    v_and_b32 v6, 1, v5")
    e(f"    v_lshl_add_u32 v{VF}, v6, 4, v{VF}")
    e("    v_lshrrev_b32 v6, 1, v5")
    e(f"    v_lshl_add_u32 v{VF}, v6, {i2-7}, v{VF}")
    e("    s_mov_b32 s22, 65536")
    e("    s_mov_b32 s23, 0x00020000")
    if probe == 3:
        e("    s_memrealtime s[60:61]")
    e("    s_waitcnt lgkmcnt(0)")
    if probe == 2:
        e("    s_memrealtime s[60:61]")
    e("    s_add_u32 s16, s8, s28")
    e("    s_addc_u32 s17, s9, s27")

    def dload(n, so):
        o = (n & 3) * 1024
        off = f" offset:{o}" if o else ""
        v = VD + 2 * (n >> 2) + ((n >> 1) & 1)
        e(f"    buffer_load_dwordx4 v{v}, s[16:19], {so} offen{off}{fl} lds")

    pre = {3: ["s_mov_b64 s[20:21], s[12:13]"]}
    for c in range(1, 4):
        pre.setdefault(8 * c - 5, []).extend(dtab(2 * c))
        pre.setdefault(8 * c - 1, []).extend(dtab(2 * c + 1) + [f"v_add_u32 v{VF+c}, {doff(2*c) >> 7}, v{VF}"])
    fill = []
    for n in range(8 * NB):
        dload(n, "0")
        if n & 3 == 3:
            e("    s_add_u32 m0, m0, 4096")
            f = pre.pop(n, ["s_nop 0", "s_nop 0"])
            if n & 7 == 7:
                e("    " + f.pop(0))
                e(f"    buffer_load_dwordx4 v{VF + n//8}, s[20:23], 0 offen lds")
                e("    s_add_u32 m0, m0, 1024")
            for x in f:
                e("    " + x)
    for n in sorted(pre):
        fill += pre[n]
    fill += ["s_mov_b32 s31, 0", "s_mov_b32 s32, 0", "s_mov_b32 s33, 0",
             f"s_mov_b32 s36, {enc(w0)}", "s_mov_b32 s37, 0xc0000f", f"s_mov_b32 s38, {0xffff8001 if det else 0xffff0001:#x}",
             "s_add_u32 s10, s10, s28", "s_addc_u32 s11, s11, s27"]
    if probe == 1:
        e("    s_memrealtime s[60:61]")
    if probe < -1:
        e(f"    s_waitcnt vmcnt({9*NB + 1 + probe})")
        e("    s_memrealtime s[60:61]")
    for f in fill:
        e("    " + f)
    n_last = 8 * NB - 1
    if NB < U:
        e(f"    v_mov_b32 v12, {(n_last + n_last // 8) << 4}")
        e("    s_barrier")
        e(f"    s_branch L_p{8*NB}")
    else:
        e(f"    v_mov_b32 v12, {(n_last + n_last // 8) << 4}")
        e("    s_barrier")
        e("    ds_read_b128 v[36:39], v7 offset:16")
        e("    s_branch L_bodyend")
    e("L_body:")
    pubd = 0
    for n in range(8 * U):
        issued = n + n // 8
        e(f"L_p{n}:")
        e("    s_getreg_b32 s40, hwreg(HW_REG_IB_STS)")
        e("    s_and_b32 s40, s40, s37")
        e("    s_cmp_ge_u32 s40, s36")
        e(f"    s_cbranch_scc1 L_p{n}")
        dload(n, "s32")
        if n & 3 == 3:
            e("    s_add_u32 m0, m0, 4096")
            e(f"    v_add_u32 v12, {(issued - pubd) << 4}, v12")
            pubd = issued
            if n & 7 == 7:
                e(f"    buffer_load_dwordx4 v{VF + n//8}, s[20:23], s33 offen lds")
                e("    s_add_u32 m0, m0, 1024")
            if n % wr == wr - 1 and n != 8 * U - 1:
                e("    s_waitcnt lgkmcnt(0)")
                e("    v_readfirstlane_b32 s36, v10")
            e("    v_add_u32 v11, s40, v12")
            e("    ds_write_b32 v7, v11")
        if n == 8 * U - 5:
            e("    ds_read_b128 v[36:39], v7 offset:16")
        elif n % wr == wr - 5:
            e("    ds_read_b32 v10, v7 offset:24          ; window")
        if probe >= 4 and n == 31:
            e(f"    s_cmp_lg_u32 s31, {probe - 4}")
            e("    s_cbranch_scc1 L_nopr")
            e("    s_memrealtime s[60:61]")
            e("L_nopr:")
    e("L_bodyend:")
    e(f"    v_add_u32 v12, {(9*U - pubd) << 4}, v12")
    e(f"    s_add_u32 s31, s31, {U}")
    e("    s_cmp_eq_u32 s31, 256")
    e("    s_cbranch_scc1 L_drain")
    e(f"    s_cmp_eq_u32 m0, {SLOT*S}")
    e("    s_cselect_b32 m0, 0, m0")
    e("    s_bitcmp1_b32 s31, 7                   ; order: K0 K1 V0 V1")
    e("    s_cselect_b64 s[16:17], s[10:11], s[16:17]")
    e("    s_cselect_b64 s[20:21], s[14:15], s[20:21]")
    e("    s_bfe_u32 s30, s31, 0x40002")
    e(f"    s_cselect_b32 s38, s38, {0xffff8000 if det else 0xffff0000:#x}")
    e("L_chkfree:")
    e("    s_waitcnt lgkmcnt(0)")
    e("    v_min_u32 v36, v36, v37")
    e("    v_readfirstlane_b32 s36, v38")
    e("    v_readfirstlane_b32 s29, v36")
    e("    v_readfirstlane_b32 s39, v39")
    e(f"    s_add_u32 s29, s29, {S - U}")
    e("    s_cmp_gt_u32 s31, s29")
    e("    s_cbranch_scc1 L_full")
    e("    s_add_u32 s30, s30, s39")
    e("    s_ff0_i32_b32 s29, s38")
    e("    s_bitcmp1_b32 s38, s30")
    e("    s_cselect_b32 s30, s29, s30")
    e("    s_bitset1_b32 s38, s30")
    b_ = 2
    first = True
    while b_ < len(cpos):
        n = 1
        while b_ + n < len(cpos) and cpos[b_ + n] == cpos[b_] + n:
            n += 1
        e(f"    s_bfe_u32 s29, s30, {(n<<16) | (b_ - 2):#x}")
        if first:
            e(f"    s_lshl_b32 s32, s29, {cpos[b_]}")
        else:
            e(f"    s_lshl_b32 s29, s29, {cpos[b_]}")
            e("    s_or_b32 s32, s32, s29")
        first = False
        b_ += n
    e("    s_lshr_b32 s33, s32, 7")
    e(f"    s_bfe_u32 s29, s31, {(1<<16) | 6:#x}")
    e("    s_lshl_b32 s29, s29, 19")
    e("    s_or_b32 s32, s32, s29")
    e("    s_branch L_body")
    e("L_full:")
    e("    s_getreg_b32 s40, hwreg(HW_REG_IB_STS)")
    e("    s_and_b32 s40, s40, s37")
    e("    v_add_u32 v11, s40, v12")
    e("    ds_write_b32 v7, v11")
    e("    ds_read_b128 v[36:39], v7 offset:16")
    e("    s_branch L_chkfree")
    e("L_drain:")
    if endbar:
        assert wmax + 1 <= 45
        for n in (36, 27, 18, 9):
            e(f"    v_mov_b32 v11, {(2304 - n) << 4}")
            e(f"    s_waitcnt vmcnt({n})")
            e("    ds_max_u32 v7, v11" if False else "    ds_write_b32 v7, v11")
        e("    s_waitcnt vmcnt(0)")
        e("    s_barrier")
    else:
        e("    s_getreg_b32 s40, hwreg(HW_REG_IB_STS)")
        e("    s_and_b32 s40, s40, s37")
        e("    v_add_u32 v11, s40, v12")
        e("    ds_write_b32 v7, v11")
        e("    s_cbranch_scc1 L_drain")
    if probe == -1:
        e("    s_memrealtime s[60:61]")
    e("    s_branch L_exit" if probe else "    s_endpgm")

    def decode(d):
        e(f"    s_lshr_b32 s29, s{d}, 18")
        e(f"    s_and_b32 s30, s{d}, 15")
        e("    s_or_b32 s29, s29, s30")
        e(f"    s_bfe_u32 s{d}, s{d}, 0xe0004")
        e(f"    s_sub_u32 s{d}, s{d}, s29")

    e("L_control:")
    if tlb:
        blockid(28)
        e("    s_lshl_b32 s28, s28, 20")
        e("    v_mov_b32 v16, s28")
        e("    global_load_dword v17, v16, s[10:11] nt")
    if ctl == 3:
        lM = M.bit_length() - 1
        e("    s_load_dwordx2 s[50:51], s[0:1], 56    ; ws")
        e(f"    v_and_b32 v9, {NR-1}, v0")
        e(f"    v_mul_u32_u24 v9, {STR}, v9")
        e(f"    v_add_u32 v9, {WSB}, v9")
        e(f"    s_mul_i32 s58, s2, {STR}")
        e(f"    s_add_u32 s58, s58, {WSB}")
        e(f"    s_mov_b32 s31, {9*est}")
        e(f"    s_mov_b32 s33, {est}")
        e("    s_mov_b32 s52, 0")
        e(f"    s_mov_b32 s53, {P0}")
        e("    s_mov_b32 s56, 0")
        e("    s_mov_b32 s57, 0")
        e("    s_mov_b32 s55, 0")
        e("    s_mov_b32 s35, 0")
        e("    s_mov_b64 exec, 0xffff")
        e("    s_waitcnt lgkmcnt(0)")
        e("    s_sub_u32 s40, s40, 300")
        e("L_step:")
        e("    ds_read_b32 v8, v7")
        e("    s_waitcnt lgkmcnt(0)")
        e("    v_readfirstlane_b32 s28, v8")
        decode(28)
        e("    s_cmp_lt_u32 s28, s31")
        e("    s_cbranch_scc1 L_step")
        e("    s_memrealtime s[44:45]")
        e(f"    s_and_b32 s34, s33, {M-1}")
        e(f"    s_cmp_ge_u32 s33, {256 - M}")
        e("    s_cselect_b32 s34, -1, s34")
        e("    s_waitcnt lgkmcnt(0)")
        e("    s_sub_u32 s54, s44, s40                ; now")
        e(f"    s_cmp_lg_u32 s34, {sub}")
        e("    s_cbranch_scc1 L_nocons")
        e(f"    s_cmp_lt_u32 s33, {M}")
        e("    s_cbranch_scc1 L_nocons")
        e("    s_waitcnt vmcnt(0)")
        e("    v_subrev_u32 v12, s40, v12")
        if trace:
            e("    v_cmp_lt_u32 vcc, s55, v12")
            e("    s_nop 1")
            e("    s_bcnt1_i32_b64 s42, vcc")
        e("    v_min_u32 v12, s55, v12")
        e("    s_nop 1")
        for d in (1, 2, 4, 8):
            if d < NR:
                e(f"    v_add_u32_dpp v12, v12, v12 row_ror:{d} row_mask:0xf bank_mask:0xf")
                e("    s_nop 1")
        e("    v_readfirstlane_b32 s38, v12")
        e(f"    s_lshr_b32 s38, s38, {NR.bit_length()-1}")
        e("    s_sub_u32 s35, s59, s38")
        e("    s_sub_u32 s39, s38, s52")
        e("    s_mov_b32 s52, s38")
        e(f"    s_sub_u32 s56, s33, {M + sub}")
        e(f"    s_max_u32 s56, s56, {est}")
        e("    s_sub_u32 s38, s39, s53")
        if pc:
            e(f"    s_max_i32 s38, s38, {-pc}")
            e(f"    s_min_i32 s38, s38, {pc}")
            e(f"    s_add_u32 s38, s38, {1 << (psh - 1)}")
        e(f"    s_ashr_i32 s38, s38, {psh}")
        e("    s_add_u32 s38, s38, s53")
        e(f"    s_cmp_lt_u32 s33, {3*M}")
        e("    s_cselect_b32 s53, s53, s38")
        e("L_nocons:")
        e(f"    s_cmp_lt_u32 s33, {M + sub}")
        e("    s_cbranch_scc1 L_noctl")
        e("    s_sub_u32 s38, s33, s56")
        e("    s_mul_i32 s38, s38, s53")
        e(f"    s_lshr_b32 s38, s38, {lM}")
        e("    s_add_u32 s38, s38, s52")
        e("    s_sub_u32 s38, s54, s38")
        if skip:
            e(f"    s_mul_i32 s39, s57, {BT}")
            if rob:
                e("    s_min_i32 s36, s35, s38")
                e("    s_sub_u32 s36, s36, s39")
            e("    s_sub_u32 s39, s38, s39")
            e(f"    s_cmp_gt_i32 s{36 if rob else 39}, {up}")
            e("    s_addc_u32 s57, s57, 0")
            e(f"    s_cmp_lt_i32 s39, {-dn}")
            e("    s_subb_u32 s57, s57, 0")
            e("    s_max_i32 s57, s57, 0")
            e("    s_min_i32 s57, s57, 15")
            e("    v_mov_b32 v8, s57")
            e("    ds_write_b32 v7, v8 offset:28")
        if knee:
            e(f"    s_sub_u32 s39, s38, {knee}")
            e(f"    s_ashr_i32 s39, s39, {ksh}")
            e(f"    s_add_u32 s39, s39, {knee}")
            e("    s_min_i32 s38, s38, s39")
        e(f"    s_add_u32 s38, s38, {1 << (sh-1)}")
        e(f"    s_ashr_i32 s38, s38, {sh}")
        e(f"    s_add_u32 s38, s38, {mid}")
        e(f"    s_max_i32 s38, s38, {wmin}")
        if eb:
            e(f"    s_cmp_ge_u32 s33, {256 - eb}")
            e(f"    s_cselect_b32 s39, {ebw}, 0")
            e("    s_add_u32 s38, s38, s39")
        e(f"    s_min_i32 s38, s38, {wmax}")
        e("    s_lshl_b32 s39, s38, 18")
        e("    s_or_b32 s38, s38, s39")
        e("    s_and_b32 s38, s38, 0xc0000f")
        e("    v_mov_b32 v8, s38")
        e("    ds_write_b32 v7, v8 offset:24")
        if trace:
            e(f"    s_cmp_lg_u32 s34, {sub}")
            e("    s_cbranch_scc1 L_noctl")
            e(f"    s_lshr_b32 s43, s33, {lM}")
            e("    s_lshr_b32 s39, s39, 18")
            e("    s_mov_b32 m0, s43")
            e("    v_writelane_b32 v20, s54, m0")
            e("    v_writelane_b32 v21, s52, m0")
            e("    v_writelane_b32 v22, s42, m0")
            e("    v_writelane_b32 v23, s39, m0")
        e("L_noctl:")
        e(f"    s_cmp_eq_u32 s33, {est}")
        e("    s_cselect_b32 s34, 0, s34")
        e("    s_cmp_lg_u32 s34, 0")
        e("    s_cbranch_scc1 L_noep")
        e("    s_mov_b32 s59, s55")
        e("    s_mov_b32 s55, s54")
        e(f"    s_cmp_ge_u32 s2, {NR}")
        e("    s_cbranch_scc1 L_norep")
        e("    v_mov_b32 v10, s44")
        e("    v_mov_b32 v11, s44")
        e("    v_lshl_add_u32 v15, v4, 3, s58")
        e("    global_store_dwordx2 v15, v[10:11], s[50:51] sc0 sc1")
        e(f"    s_add_u32 s58, s58, {STR*NR}")
        e("L_norep:")
        e(f"    s_cmp_eq_u32 s33, {est}")
        e("    s_cbranch_scc1 L_noep")
        e("    global_load_dword v12, v9, s[50:51] sc0 sc1")
        e(f"    v_add_u32 v9, {STR*NR}, v9")
        e("L_noep:")
        e(f"    s_add_u32 s31, s31, {9*sub}")
        e(f"    s_add_u32 s33, s33, {sub}")
        e("    s_cmp_lt_u32 s33, 252")
        e("    s_cbranch_scc1 L_step")
    elif ctl == 4:
        lM = M.bit_length() - 1
        e("    s_load_dwordx2 s[50:51], s[0:1], 56    ; ws")
        e(f"    v_and_b32 v9, {NR-1}, v0")
        e(f"    v_mul_u32_u24 v9, {STR}, v9")
        e(f"    v_add_u32 v9, {WSB}, v9")
        e(f"    s_mul_i32 s58, s2, {STR}")
        e(f"    s_add_u32 s58, s58, {WSB + STR*NR}")
        e(f"    s_mov_b32 s31, {9*M}")
        e(f"    s_mov_b32 s33, {M}")
        e("    s_mov_b32 s52, 0")
        e("    s_mov_b32 s53, 0")
        e("    s_mov_b32 s56, 0")
        e("    s_mov_b32 s57, 0")
        e("    s_mov_b32 s55, 0")
        e("    s_mov_b32 s35, 0")
        e(f"    s_mov_b64 exec, {(1 << NR) - 1:#x}" if NR == 16 else "    s_mov_b32 exec_hi, 0")
        e("    s_and_b32 s46, s2, 7")
        e("    s_add_u32 s47, s46, 16")
        e("    s_mov_b32 s48, 0")
        e("    s_mov_b32 s49, 0")
        e("    s_waitcnt lgkmcnt(0)")
        e("    s_sub_u32 s40, s40, 300")
        e("L_step:")
        e("    ds_read_b32 v8, v7")
        e("    s_waitcnt lgkmcnt(0)")
        e("    v_readfirstlane_b32 s28, v8")
        decode(28)
        e("    s_cmp_lt_u32 s28, s31")
        e("    s_cbranch_scc1 L_step")
        e("    s_memrealtime s[44:45]")
        e(f"    s_and_b32 s34, s33, {M-1}")
        e(f"    s_cmp_ge_u32 s33, {256 - M}")
        e("    s_cselect_b32 s34, -1, s34")
        e("    s_waitcnt lgkmcnt(0)")
        e("    s_sub_u32 s54, s44, s40                ; now")
        e(f"    s_cmp_lg_u32 s34, {sub}")
        e("    s_cbranch_scc1 L_nocons")
        e(f"    s_cmp_lt_u32 s33, {2*M}")
        e("    s_cbranch_scc1 L_nocons")
        e("    s_waitcnt vmcnt(0)")
        e("    v_subrev_u32 v12, s40, v12")
        if trace:
            e("    v_cmp_lt_u32 vcc, s55, v12")
            e("    s_nop 1")
            e("    s_bcnt1_i32_b64 s42, vcc")
        e("    v_min_u32 v12, s55, v12")
        e("    s_nop 1")
        e("    v_add_u32_dpp v12, v12, v12 row_ror:8 row_mask:0xf bank_mask:0xf")
        e("    s_nop 1")
        e("    v_readlane_b32 s48, v12, s46")
        if NR == 32:
            e("    v_readlane_b32 s49, v12, s47")
        for d in (1, 2, 4):
            e(f"    v_add_u32_dpp v12, v12, v12 row_ror:{d} row_mask:0xf bank_mask:0xf")
            e("    s_nop 1")
        e("    v_readlane_b32 s38, v12, 0")
        if NR == 32:
            e("    v_readlane_b32 s39, v12, 16")
            e("    s_add_u32 s48, s48, s49")
            e("    s_add_u32 s38, s38, s39")
        e(f"    s_lshr_b32 s38, s38, {NR.bit_length()-1}")
        e(f"    s_lshr_b32 s48, s48, {NR.bit_length()-4}")
        e("    s_sub_u32 s48, s48, s38")
        e(f"    s_max_i32 s49, s48, {-glo}")
        e(f"    s_min_i32 s49, s49, {ghi}")
        e("    s_sub_u32 s48, s48, s49")
        e("    s_sub_u32 s35, s59, s38")
        e("    s_sub_u32 s39, s38, s52")
        e("    s_mov_b32 s52, s38")
        e(f"    s_sub_u32 s56, s33, {M + sub}")
        e("    s_sub_u32 s38, s39, s53")
        if pc:
            e(f"    s_max_i32 s38, s38, {-pc}")
            e(f"    s_min_i32 s38, s38, {pc}")
            e(f"    s_add_u32 s38, s38, {1 << (psh - 1)}")
        e(f"    s_ashr_i32 s38, s38, {psh}")
        e("    s_add_u32 s38, s38, s53")
        e(f"    s_cmp_lt_u32 s33, {4*M}")
        e("    s_cselect_b32 s53, s39, s38")
        e("L_nocons:")
        e(f"    s_cmp_lt_u32 s33, {3*M + sub}")
        e("    s_cbranch_scc1 L_noctl")
        e("    s_sub_u32 s38, s33, s56")
        e("    s_mul_i32 s38, s38, s53")
        e(f"    s_lshr_b32 s38, s38, {lM}")
        e("    s_add_u32 s38, s38, s52")
        e("    s_sub_u32 s38, s54, s38")
        if skip:
            e(f"    s_mul_i32 s39, s57, {BT}")
            if rob:
                e("    s_min_i32 s36, s35, s38")
                e("    s_sub_u32 s36, s36, s39")
            e("    s_sub_u32 s39, s38, s39")
            e(f"    s_cmp_gt_i32 s{36 if rob else 39}, {up}")
            e("    s_addc_u32 s57, s57, 0")
            e(f"    s_cmp_lt_i32 s39, {-dn}")
            e("    s_subb_u32 s57, s57, 0")
            e("    s_max_i32 s57, s57, 0")
            e("    s_min_i32 s57, s57, 15")
            e("    v_mov_b32 v8, s57")
            e("    ds_write_b32 v7, v8 offset:28")
        if knee:
            e(f"    s_sub_u32 s39, s38, {knee}")
            e(f"    s_ashr_i32 s39, s39, {ksh}")
            e(f"    s_add_u32 s39, s39, {knee}")
            e("    s_min_i32 s38, s38, s39")
        e("    s_sub_u32 s38, s38, s48")
        e(f"    s_add_u32 s38, s38, {1 << (sh-1)}")
        e(f"    s_ashr_i32 s38, s38, {sh}")
        e(f"    s_add_u32 s38, s38, {mid}")
        e(f"    s_max_i32 s38, s38, {wmin}")
        if eb:
            e(f"    s_cmp_ge_u32 s33, {256 - eb}")
            e(f"    s_cselect_b32 s39, {ebw}, 0")
            e("    s_add_u32 s38, s38, s39")
        e(f"    s_min_i32 s38, s38, {wmax}")
        e("    s_lshl_b32 s39, s38, 18")
        e("    s_or_b32 s38, s38, s39")
        e("    s_and_b32 s38, s38, 0xc0000f")
        e("    v_mov_b32 v8, s38")
        e("    ds_write_b32 v7, v8 offset:24")
        if trace:
            e(f"    s_cmp_lg_u32 s34, {sub}")
            e("    s_cbranch_scc1 L_noctl")
            e(f"    s_lshr_b32 s43, s33, {lM}")
            e("    s_lshr_b32 s39, s39, 18")
            e("    s_mov_b32 m0, s43")
            e("    v_writelane_b32 v20, s54, m0")
            e("    v_writelane_b32 v21, s52, m0")
            e("    v_writelane_b32 v22, s42, m0")
            e("    v_writelane_b32 v23, s39, m0")
        e("L_noctl:")
        e("    s_cmp_lg_u32 s34, 0")
        e("    s_cbranch_scc1 L_noep")
        e("    s_mov_b32 s59, s55")
        e("    s_mov_b32 s55, s54")
        e(f"    s_cmp_ge_u32 s2, {NR}")
        e("    s_cbranch_scc1 L_norep")
        e("    v_mov_b32 v10, s44")
        e("    v_mov_b32 v11, s44")
        e("    v_lshl_add_u32 v15, v4, 3, s58")
        e("    global_store_dwordx2 v15, v[10:11], s[50:51] sc0 sc1")
        e(f"    s_add_u32 s58, s58, {STR*NR}")
        e("L_norep:")
        e(f"    s_cmp_eq_u32 s33, {M}")
        e("    s_cbranch_scc1 L_nold")
        e("    global_load_dword v12, v9, s[50:51] sc0 sc1")
        e("L_nold:")
        e(f"    v_add_u32 v9, {STR*NR}, v9")
        e("L_noep:")
        e(f"    s_add_u32 s31, s31, {9*sub}")
        e(f"    s_add_u32 s33, s33, {sub}")
        e("    s_cmp_lt_u32 s33, 252")
        e("    s_cbranch_scc1 L_step")
    elif ctl == 2:
        lM = M.bit_length() - 1
        e("    s_load_dwordx2 s[50:51], s[0:1], 56    ; ws")
        e(f"    v_and_b32 v9, {NR-1}, v0")
        e(f"    v_mul_u32_u24 v9, {STR}, v9")
        e(f"    v_add_u32 v9, {WSB}, v9")
        e(f"    s_mul_i32 s58, s2, {STR}")
        e(f"    s_add_u32 s58, s58, {WSB + STR*NR}")
        e(f"    s_mov_b32 s31, {9*M}")
        e(f"    s_mov_b32 s33, {M}")
        e("    s_mov_b32 s52, 0")
        e("    s_mov_b32 s53, 0")
        e("    s_mov_b32 s56, 0")
        e("    s_mov_b32 s57, 0")
        e("    s_mov_b32 s55, 0")
        e("    s_mov_b32 s35, 0")
        e("    s_mov_b64 exec, 0xffff")
        e("    s_waitcnt lgkmcnt(0)")
        if ramp:
            e("    s_mov_b32 s37, 0")
            e(f"    s_cmp_ge_u32 s2, {NR}")
            e("    s_cbranch_scc1 L_norep0")
            e("    v_mov_b32 v10, s40")
            e("    v_mov_b32 v11, s40")
            e("    v_lshl_add_u32 v15, v4, 3, s58")
            e(f"    v_subrev_u32 v15, {STR*NR}, v15")
            e("    global_store_dwordx2 v15, v[10:11], s[50:51] sc0 sc1")
            e("L_norep0:")
        e("    s_sub_u32 s40, s40, 300")
        e("L_step:")
        e("    ds_read_b32 v8, v7")
        e("    s_waitcnt lgkmcnt(0)")
        e("    v_readfirstlane_b32 s28, v8")
        decode(28)
        e("    s_cmp_lt_u32 s28, s31")
        e("    s_cbranch_scc1 L_step")
        e("    s_memrealtime s[44:45]")
        e(f"    s_and_b32 s34, s33, {M-1}")
        e(f"    s_cmp_ge_u32 s33, {256 - M}")
        e("    s_cselect_b32 s34, -1, s34")
        e("    s_waitcnt lgkmcnt(0)")
        e("    s_sub_u32 s54, s44, s40                ; now")
        e(f"    s_cmp_lg_u32 s34, {sub}")
        e("    s_cbranch_scc1 L_nocons")
        if not ramp:
            e(f"    s_cmp_lt_u32 s33, {2*M}")
            e("    s_cbranch_scc1 L_nocons")
        e("    s_waitcnt vmcnt(0)")
        e("    v_subrev_u32 v12, s40, v12")
        if trace:
            e("    v_cmp_lt_u32 vcc, s55, v12")
            e("    s_nop 1")
            e("    s_bcnt1_i32_b64 s42, vcc")
        e("    v_min_u32 v12, s55, v12")
        e("    s_nop 1")
        for d in (1, 2, 4, 8):
            if d < NR:
                e(f"    v_add_u32_dpp v12, v12, v12 row_ror:{d} row_mask:0xf bank_mask:0xf")
                e("    s_nop 1")
        e("    v_readfirstlane_b32 s38, v12")
        e(f"    s_lshr_b32 s38, s38, {NR.bit_length()-1}")
        if ramp:
            e("    s_sub_u32 s39, 300, s38")
            e(f"    s_cmp_lt_u32 s33, {2*M}")
            e("    s_cselect_b32 s37, s39, s37")
        e("    s_sub_u32 s35, s59, s38")
        e("    s_sub_u32 s39, s38, s52")
        e("    s_mov_b32 s52, s38")
        e(f"    s_sub_u32 s56, s33, {M + sub}")
        e("    s_sub_u32 s38, s39, s53")
        if pc:
            e(f"    s_max_i32 s38, s38, {-pc}")
            e(f"    s_min_i32 s38, s38, {pc}")
            e(f"    s_add_u32 s38, s38, {1 << (psh - 1)}")
        e(f"    s_ashr_i32 s38, s38, {psh}")
        e("    s_add_u32 s38, s38, s53")
        e(f"    s_cmp_lt_u32 s33, {4*M}")
        e("    s_cselect_b32 s53, s39, s38")
        e("L_nocons:")
        e(f"    s_cmp_lt_u32 s33, {3*M + sub}")
        e("    s_cbranch_scc1 L_noctl")
        e("    s_sub_u32 s38, s33, s56")
        e("    s_mul_i32 s38, s38, s53")
        e(f"    s_lshr_b32 s38, s38, {lM}")
        e("    s_add_u32 s38, s38, s52")
        e("    s_sub_u32 s38, s54, s38")
        if ramp:
            e(f"    s_sub_u32 s39, {rend}, s33")
            e("    s_max_i32 s39, s39, 0")
            e("    s_mul_i32 s39, s39, s37")
            e(f"    s_ashr_i32 s46, s39, {rsh}")
            e("    s_sub_u32 s38, s38, s46")
        if skip:
            e(f"    s_mul_i32 s39, s57, {BT}")
            if rob:
                if ramp:
                    e("    s_sub_u32 s36, s35, s46")
                    e("    s_min_i32 s36, s36, s38")
                else:
                    e("    s_min_i32 s36, s35, s38")
                e("    s_sub_u32 s36, s36, s39")
            e("    s_sub_u32 s39, s38, s39")
            e(f"    s_cmp_gt_i32 s{36 if rob else 39}, {up}")
            e("    s_addc_u32 s57, s57, 0")
            e(f"    s_cmp_lt_i32 s39, {-dn}")
            e("    s_subb_u32 s57, s57, 0")
            e("    s_max_i32 s57, s57, 0")
            e("    s_min_i32 s57, s57, 15")
            e("    v_mov_b32 v8, s57")
            e("    ds_write_b32 v7, v8 offset:28")
        if knee:
            e(f"    s_sub_u32 s39, s38, {knee}")
            e(f"    s_ashr_i32 s39, s39, {ksh}")
            e(f"    s_add_u32 s39, s39, {knee}")
            e("    s_min_i32 s38, s38, s39")
        e(f"    s_add_u32 s38, s38, {1 << (sh-1)}")
        e(f"    s_ashr_i32 s38, s38, {sh}")
        e(f"    s_add_u32 s38, s38, {mid}")
        e(f"    s_max_i32 s38, s38, {wmin}")
        if eb:
            e(f"    s_cmp_ge_u32 s33, {256 - eb}")
            e(f"    s_cselect_b32 s39, {ebw}, 0")
            e("    s_add_u32 s38, s38, s39")
        e(f"    s_min_i32 s38, s38, {wmax}")
        e("    s_lshl_b32 s39, s38, 18")
        e("    s_or_b32 s38, s38, s39")
        e("    s_and_b32 s38, s38, 0xc0000f")
        e("    v_mov_b32 v8, s38")
        e("    ds_write_b32 v7, v8 offset:24")
        if trace:
            e(f"    s_cmp_lg_u32 s34, {sub}")
            e("    s_cbranch_scc1 L_noctl")
            e(f"    s_lshr_b32 s43, s33, {lM}")
            e("    s_lshr_b32 s39, s39, 18")
            e("    s_mov_b32 m0, s43")
            e("    v_writelane_b32 v20, s54, m0")
            e("    v_writelane_b32 v21, s52, m0")
            e("    v_writelane_b32 v22, s42, m0")
            e("    v_writelane_b32 v23, s39, m0")
        e("L_noctl:")
        e("    s_cmp_lg_u32 s34, 0")
        e("    s_cbranch_scc1 L_noep")
        e("    s_mov_b32 s59, s55")
        e("    s_mov_b32 s55, s54")
        e(f"    s_cmp_ge_u32 s2, {NR}")
        e("    s_cbranch_scc1 L_norep")
        e("    v_mov_b32 v10, s44")
        e("    v_mov_b32 v11, s44")
        e("    v_lshl_add_u32 v15, v4, 3, s58")
        e("    global_store_dwordx2 v15, v[10:11], s[50:51] sc0 sc1")
        e(f"    s_add_u32 s58, s58, {STR*NR}")
        e("L_norep:")
        if not ramp:
            e(f"    s_cmp_eq_u32 s33, {M}")
            e("    s_cbranch_scc1 L_nold")
        e("    global_load_dword v12, v9, s[50:51] sc0 sc1")
        e("L_nold:")
        e(f"    v_add_u32 v9, {STR*NR}, v9")
        e("L_noep:")
        e(f"    s_add_u32 s31, s31, {9*sub}")
        e(f"    s_add_u32 s33, s33, {sub}")
        e("    s_cmp_lt_u32 s33, 252")
        e("    s_cbranch_scc1 L_step")
    elif ctl:
        e("    s_load_dwordx2 s[50:51], s[0:1], 56    ; ws")
        e(f"    v_and_b32 v9, {NR-1}, v0")
        e(f"    v_mul_u32_u24 v9, {STR}, v9")
        e(f"    v_add_u32 v9, {WSB}, v9")
        e(f"    s_mul_i32 s58, s2, {STR}")
        e(f"    s_add_u32 s58, s58, {WSB + STR*NR}")
        e(f"    s_mov_b32 s31, {9*M}")
        e("    s_mov_b32 s54, 0")
        e("    s_mov_b64 exec, 0xffff")
        e("L_epoch:")
        e("    ds_read_b32 v8, v7")
        e("    s_waitcnt lgkmcnt(0)")
        e("    v_readfirstlane_b32 s28, v8")
        decode(28)
        e("    s_cmp_lt_u32 s28, s31")
        e("    s_cbranch_scc1 L_epoch")
        e("    s_memrealtime s[44:45]")
        e("    s_mov_b32 s55, s54")
        e(f"    s_cmp_eq_u32 s31, {9*M}")
        e("    s_cbranch_scc1 L_first")
        e("    global_load_dword v12, v9, s[50:51] sc0 sc1")
        e("L_first:")
        e(f"    v_add_u32 v9, {STR*NR}, v9")
        e("    s_waitcnt lgkmcnt(0)")
        e("    s_sub_u32 s54, s44, s40")
        e(f"    s_cmp_ge_u32 s2, {NR}")
        e("    s_cbranch_scc1 L_norep")
        e("    v_mov_b32 v10, s44")
        e("    v_mov_b32 v11, s44")
        e("    v_lshl_add_u32 v15, v4, 3, s58")
        e("    global_store_dwordx2 v15, v[10:11], s[50:51] sc0 sc1")
        e(f"    s_add_u32 s58, s58, {STR*NR}")
        e("    s_waitcnt vmcnt(1)")
        e("    s_branch L_rep")
        e("L_norep:")
        e("    s_waitcnt vmcnt(0)")
        e("L_rep:")
        e(f"    s_cmp_eq_u32 s31, {9*M}")
        e("    s_cbranch_scc1 L_next")
        e("    v_subrev_u32 v12, s40, v12")
        if vo:
            e("    v_cmp_ge_u32 vcc, s54, v12")
            e("    v_mov_b32 v13, s55")
            e("    s_nop 0")
            e("    v_cndmask_b32 v12, v13, v12, vcc")
        else:
            if trace:
                e("    v_cmp_lt_u32 vcc, s54, v12")
                e("    s_nop 1")
                e("    s_bcnt1_i32_b64 s42, vcc")
            e("    v_min_u32 v12, s54, v12")
        e("    s_nop 1")
        for d in (1, 2, 4, 8):
            if d < NR:
                e(f"    v_add_u32_dpp v12, v12, v12 row_ror:{d} row_mask:0xf bank_mask:0xf")
                e("    s_nop 1")
        e("    v_readfirstlane_b32 s38, v12")
        e(f"    s_lshr_b32 s38, s38, {NR.bit_length()-1}")
        e("    s_mov_b32 s52, s38")
        e("    s_sub_u32 s38, s55, s38")
        e(f"    s_add_u32 s38, s38, {1 << (sh-1)}")
        e(f"    s_ashr_i32 s38, s38, {sh}")
        e(f"    s_add_u32 s38, s38, {mid}")
        e(f"    s_max_i32 s38, s38, {wmin}")
        if eb:
            e(f"    s_cmp_ge_u32 s33, {256 - eb}")
            e(f"    s_cselect_b32 s39, {ebw}, 0")
            e("    s_add_u32 s38, s38, s39")
        e(f"    s_min_i32 s38, s38, {wmax}")
        e("    s_lshl_b32 s39, s38, 18")
        e("    s_or_b32 s38, s38, s39")
        e("    s_and_b32 s38, s38, 0xc0000f")
        e("    v_mov_b32 v8, s38")
        e("    ds_write_b32 v7, v8 offset:24")
        if trace:
            e(f"    s_mul_i32 s43, s31, {(1 << 16) // (9*M) + 1}")
            e("    s_lshr_b32 s43, s43, 16")
            e("    s_lshr_b32 s39, s39, 18")
            e("    s_mov_b32 m0, s43")
            e("    v_writelane_b32 v20, s54, m0")
            e("    v_writelane_b32 v21, s52, m0")
            e("    v_writelane_b32 v22, s42, m0")
            e("    v_writelane_b32 v23, s39, m0")
        e("L_next:")
        e(f"    s_add_u32 s31, s31, {9*M}")
        e(f"    s_cmp_lt_u32 s31, {9*(256 - M)}")
        e("    s_cbranch_scc1 L_epoch")
    if trace:
        e("    s_mov_b64 exec, -1")
        e("    v_writelane_b32 v20, s40, 0")
        e("    v_and_b32 v0, 63, v0")
        e("    s_lshl_b32 s28, s2, 10")
        e(f"    s_add_u32 s28, s28, {8 << 20}")
        e("    v_lshl_add_u32 v24, v0, 4, s28")
        e("    global_store_dwordx4 v24, v[20:23], s[50:51]")
    e("    s_endpgm")
    e("L_consumer:")
    VA = 8
    VT = 14
    VE = 20
    VB = 24
    VACC = 40
    VQ = 56
    VP = 72
    VO = 76
    VX = 84
    VS = 100
    NV = 132 if det else 100
    e("    s_load_dwordx2 s[4:5], s[0:1], 0       ; q")
    e("    s_load_dwordx2 s[14:15], s[0:1], 40    ; out")
    e("    s_lshr_b32 s3, s3, 7                   ; consumer 0/1")
    e("    v_and_b32 v0, 63, v0")
    e("    v_bfe_u32 v6, v0, 2, 2                 ; rr")
    e("    v_lshl_add_u32 v12, v5, 3, v6")
    e("    v_and_b32 v13, 1, v5")
    e("    v_lshl_add_u32 v6, v13, 2, v6")
    e("    s_lshl_b32 s28, s3, 2")
    e("    v_xor_b32 v6, s28, v6")
    e("    v_lshlrev_b32 v6, 5, v6")
    e("    v_lshl_add_u32 v6, v12, 8, v6")
    e("    v_and_b32 v13, 3, v0")
    e(f"    v_lshl_add_u32 v{VA}, v13, 3, v6")
    for j in range(1, 4):
        e(f"    v_xor_b32 v{VA+j}, {32*j}, v{VA}")
    e(f"    v_lshlrev_b32 v{VA+4}, 4, v0")
    e(f"    v_add_u32 v{VA+4}, 8192, v{VA+4}")
    e("    v_add_u32 v3, s28, v7")
    e("    v_xor_b32 v2, 4, v3")
    if wide:
        e("    v_and_b32 v13, 7, v4")
        e("    v_lshlrev_b32 v1, 8, v13")
    else:
        e("    v_lshlrev_b32 v1, 8, v4")
    e("    s_lshl_b32 s28, s3, 7")
    e("    v_add_u32 v1, s28, v1")
    if wide:
        e("    v_lshrrev_b32 v13, 3, v4")
        e("    v_lshl_add_u32 v19, v13, 6, v1")
        e("    v_and_b32 v13, 1, v5")
        e("    v_lshl_add_u32 v19, v13, 5, v19")
        e("    v_lshrrev_b32 v13, 1, v5")
        e("    v_lshl_add_u32 v19, v13, 4, v19")
        e("    v_cmp_lt_u32 vcc, 7, v4")
    e("    v_lshl_add_u32 v1, v5, 3, v1")
    blockid(28)
    e("    s_lshl_b32 s28, s28, 12")
    e("    s_mov_b32 s18, 2048")
    e("    s_mov_b32 s19, 0x00020000")
    e("    s_mov_b32 s22, 2048")
    e("    s_mov_b32 s23, 0x00020000")
    e("    s_mov_b32 s31, 0                       ; chunk")
    e("    s_mov_b32 s32, 9")
    e("    s_mov_b32 s33, 0")
    e("    s_mov_b32 s34, 0")
    e("    s_waitcnt lgkmcnt(0)")
    e("    s_add_u32 s16, s4, s28")
    e("    s_addc_u32 s17, s5, 0")
    e("    s_add_u32 s20, s16, 2048")
    e("    s_addc_u32 s21, s17, 0")
    for j in range(4):
        off = f" offset:{32*j}" if j else ""
        e(f"    buffer_load_dwordx2 v[{VQ+2*j}:{VQ+2*j+1}], v1, s[16:19], 0 offen{off}")
    for j in range(4):
        off = f" offset:{32*j}" if j else ""
        e(f"    buffer_load_dwordx2 v[{VQ+8+2*j}:{VQ+8+2*j+1}], v1, s[20:23], 0 offen{off}")
    e("    s_add_u32 s16, s14, s28")
    e("    s_addc_u32 s17, s15, 0")
    e("    s_add_u32 s20, s16, 2048")
    e("    s_addc_u32 s21, s17, 0")


    def seg(tag, isK):
        for i in range(16):
            e(f"    v_mov_b32 v{VACC+i}, 0")
        if det:
            for i in range(16):
                e(f"    v_mov_b64 v[{VS+2*i}:{VS+2*i+1}], 0")
        e(f"L_{tag}:")
        for j in range(5):
            e(f"    v_add_u32 v{VT+j}, s34, v{VA+j}")
        e("    s_add_u32 s31, s31, 1")
        e("    v_mov_b32 v13, s31")
        e("    s_cmp_ge_u32 s33, s32")
        e(f"    s_cbranch_scc1 L_{tag}_go")
        if endbar and not isK:
            e("    s_cmp_lg_u32 s31, 256")
            e(f"    s_cbranch_scc1 L_{tag}_poll")
            e("    s_barrier")
            e(f"    s_branch L_{tag}_go")
        e(f"L_{tag}_poll:")
        e("    ds_read_b32 v6, v7")
        e("    s_waitcnt lgkmcnt(0)")
        e("    v_readfirstlane_b32 s33, v6")
        decode(33)
        e("    s_cmp_lt_u32 s33, s32")
        e(f"    s_cbranch_scc1 L_{tag}_poll")
        e(f"L_{tag}_go:")
        e(f"    ds_read_b128 v[{VE}:{VE+3}], v{VT+4}")
        for j in range(4):
            e(f"    ds_read_b64_tr_b16 v[{VB+4*j}:{VB+4*j+1}], v{VT+j}")
            e(f"    ds_read_b64_tr_b16 v[{VB+4*j+2}:{VB+4*j+3}], v{VT+j} offset:1024")
        e("    ds_write_b32 v3, v13 offset:16")
        e("    s_add_u32 s32, s32, 9")
        e(f"    s_add_u32 s34, s34, {SLOT}")
        e(f"    s_cmp_eq_u32 s34, {SLOT*S}")
        e("    s_cselect_b32 s34, 0, s34")
        e(f"    s_and_b32 s28, s31, {3 if det else 63}")
        for j in range(4):
            e(f"    s_waitcnt lgkmcnt({7-2*j})")
            a = VACC + 4 * j
            t = VB + 4 * j
            if isK:
                e(f"    v_mfma_f32_16x16x32_bf16 v[{a}:{a+3}], v[{t}:{t+3}], v[{VE}:{VE+3}], v[{a}:{a+3}]")
            else:
                e(f"    v_mfma_f32_16x16x32_bf16 v[{a}:{a+3}], v[{VE}:{VE+3}], v[{t}:{t+3}], v[{a}:{a+3}]")
        e(f"    s_cbranch_scc1 L_{tag}")
        if det:
            e("    s_and_b32 s28, s31, 63")
            e("    s_cbranch_scc1 L_fold")

    if det:
        e("    s_branch L_head")
        e("L_fold:")
        e("    s_cmp_eq_u32 s28, 60")
        e("    s_nop 3")
        for i in range(16):
            t = VX + 2 * (i & 3)
            e(f"    v_cvt_f64_f32 v[{t}:{t+1}], v{VACC+i}")
            e(f"    v_mov_b32 v{VACC+i}, 0")
            e(f"    v_add_f64 v[{VS+2*i}:{VS+2*i+1}], v[{VS+2*i}:{VS+2*i+1}], v[{t}:{t+1}]")
        e("    s_cbranch_scc0 L_folded")
        for i in range(16):
            e(f"    v_cvt_f32_f64 v{VACC+i}, v[{VS+2*i}:{VS+2*i+1}]")
        e("L_folded:")
        if late > 1:
            e(f"    s_cmp_lg_u32 s31, {late}")
            e("    s_cbranch_scc1 L_nost0")
            e(f"    buffer_store_dwordx4 v[{VO}:{VO+3}], v19, s[16:19], 0 offen{s0fl}")
            e("L_nost0:")
        e("    s_bitcmp1_b32 s31, 7")
        e("    s_cbranch_scc1 L_v")
        e("    s_branch L_k")
    e("L_head:")
    seg("k", True)
    T = VX
    e("    s_waitcnt vmcnt(0)")
    e("    s_nop 5" if not det else "    s_nop 3")
    for j in range(4):
        e(f"    v_cvt_pk_bf16_f32 v{T+2*j}, v{VACC+4*j}, v{VACC+4*j+1}")
        e(f"    v_cvt_pk_bf16_f32 v{T+2*j+1}, v{VACC+4*j+2}, v{VACC+4*j+3}")
    e("    s_lshl_b32 s28, s3, 10")
    e(f"    s_add_u32 s28, s28, {SCX - 8192}")
    e(f"    v_mfma_f32_16x16x32_bf16 v[{T+8}:{T+11}], v[{T}:{T+3}], v[{VQ}:{VQ+3}], 0")
    e(f"    v_mfma_f32_16x16x32_bf16 v[{T+8}:{T+11}], v[{T+4}:{T+7}], v[{VQ+4}:{VQ+7}], v[{T+8}:{T+11}]")
    e(f"    v_add_u32 v14, s28, v{VA+4}")
    e("    v_xor_b32 v15, 16, v0")
    e("    v_xor_b32 v16, 32, v0")
    e("    v_lshlrev_b32 v15, 2, v15")
    e("    v_lshlrev_b32 v16, 2, v16")
    e("    s_xor_b32 s29, s3, 1")
    e("    s_lshl_b32 s29, s29, 10")
    e(f"    s_add_u32 s29, s29, {SCX - 8192}")
    e(f"    v_add_u32 v17, s29, v{VA+4}")
    e(f"    ds_write_b128 v14, v[{T+8}:{T+11}]")
    e("    ds_write_b32 v3, v13 offset:32")
    for i in range(8):
        e(f"    v_mov_b32 v{VQ+i}, v{VQ+8+i}")
    e("L_scpoll:")
    e("    ds_read_b32 v6, v2 offset:32")
    e("    s_waitcnt lgkmcnt(0)")
    e("    v_readfirstlane_b32 s28, v6")
    e("    s_cmp_lt_u32 s28, s31")
    e("    s_cbranch_scc1 L_scpoll")
    e(f"    ds_read_b128 v[{T}:{T+3}], v17")
    e("    s_waitcnt lgkmcnt(0)")
    for i in range(4):
        e(f"    v_add_f32 v{T+i}, v{T+i}, v{T+8+i}")

    def rnd():
        e(f"    v_cvt_pk_bf16_f32 v{T+4}, v{T}, v{T+1}")
        e(f"    v_cvt_pk_bf16_f32 v{T+5}, v{T+2}, v{T+3}")
        e(f"    v_lshlrev_b32 v{T}, 16, v{T+4}")
        e(f"    v_and_b32 v{T+1}, 0xffff0000, v{T+4}")
        e(f"    v_lshlrev_b32 v{T+2}, 16, v{T+5}")
        e(f"    v_and_b32 v{T+3}, 0xffff0000, v{T+5}")
    rnd()
    for i in range(4):
        e(f"    v_mul_f32 v{T+i}, 0x3db504f3, v{T+i}      ; 128^-0.5")
    rnd()
    e(f"    v_max_f32 v{T+4}, v{T}, v{T+1}")
    e(f"    v_max3_f32 v{T+4}, v{T+2}, v{T+3}, v{T+4}")
    e(f"    ds_bpermute_b32 v{T+5}, v15, v{T+4}")
    e("    s_waitcnt lgkmcnt(0)")
    e(f"    v_max_f32 v{T+4}, v{T+4}, v{T+5}")
    e(f"    ds_bpermute_b32 v{T+5}, v16, v{T+4}")
    e("    s_waitcnt lgkmcnt(0)")
    e(f"    v_max_f32 v{T+4}, v{T+4}, v{T+5}")
    for i in range(4):
        e(f"    v_sub_f32 v{T+i}, v{T+i}, v{T+4}")
    for i in range(4):
        e(f"    v_mul_f32 v{T+i}, 0x3fb8aa3b, v{T+i}      ; log2(e)")
    for i in range(4):
        e(f"    v_exp_f32 v{T+i}, v{T+i}")
    e("    s_nop 0")
    e(f"    v_add_f32 v{T+4}, v{T}, v{T+1}")
    e(f"    v_add_f32 v{T+5}, v{T+2}, v{T+3}")
    e(f"    v_add_f32 v{T+4}, v{T+4}, v{T+5}")
    e(f"    ds_bpermute_b32 v{T+5}, v15, v{T+4}")
    e("    s_waitcnt lgkmcnt(0)")
    e(f"    v_add_f32 v{T+4}, v{T+4}, v{T+5}")
    e(f"    ds_bpermute_b32 v{T+5}, v16, v{T+4}")
    e("    s_waitcnt lgkmcnt(0)")
    e(f"    v_add_f32 v{T+4}, v{T+4}, v{T+5}")
    e(f"    v_rcp_f32 v{T+4}, v{T+4}")
    e("    s_nop 0")
    for i in range(4):
        e(f"    v_mul_f32 v{T+i}, v{T+i}, v{T+4}")
    e(f"    v_mov_b32 v{VP}, v{VP+2}")
    e(f"    v_mov_b32 v{VP+1}, v{VP+3}")
    e(f"    v_cvt_pk_bf16_f32 v{VP+2}, v{T}, v{T+1}")
    e(f"    v_cvt_pk_bf16_f32 v{VP+3}, v{T+2}, v{T+3}")
    e("    s_cmp_eq_u32 s31, 64")
    e("    s_cbranch_scc1 L_head")
    e("L_headv:")
    seg("v", False)
    e("    s_cmp_eq_u32 s31, 256")
    if not det:
        e("    s_nop 1")
    for j in range(4):
        e(f"    v_cvt_pk_bf16_f32 v{VB+2*j}, v{VACC+4*j}, v{VACC+4*j+1}")
        e(f"    v_cvt_pk_bf16_f32 v{VB+2*j+1}, v{VACC+4*j+2}, v{VACC+4*j+3}")
    for j in range(4):
        e(f"    v_mfma_f32_16x16x16_bf16 v[{T+4*j}:{T+4*j+3}], v[{VB+2*j}:{VB+2*j+1}], v[{VP}:{VP+1}], 0")
    if wide:
        e("    s_nop 6")
        for i in range(8):
            e(f"    v_cndmask_b32 v{T+i}, v{T+i}, v{T+8+i}, vcc")
        for j in range(2):
            e(f"    v_cvt_pk_bf16_f32 v{VB+2*j}, v{T+4*j}, v{T+4*j+1}")
        for j in range(2):
            e(f"    v_cvt_pk_bf16_f32 v{VB+2*j+1}, v{T+4*j+2}, v{T+4*j+3}")
        e(f"    v_permlane16_swap_b32 v{VB}, v{VB+2}")
        e("    s_nop 0")
        e(f"    v_permlane16_swap_b32 v{VB+1}, v{VB+3}")
        if late:
            e("    s_cbranch_scc1 L_last")
            for i in range(4):
                e(f"    v_mov_b32 v{VO+i}, v{VB+i}")
            e(f"    v_mov_b32 v{VP}, v{VP+2}")
            e(f"    v_mov_b32 v{VP+1}, v{VP+3}")
            e("    s_branch L_headv")
            e("L_last:")
            e(f"    buffer_store_dwordx4 v[{VB}:{VB+3}], v19, s[20:23], 0 offen{sfl}")
            if late == 1:
                e(f"    buffer_store_dwordx4 v[{VO}:{VO+3}], v19, s[16:19], 0 offen{sfl}")
        else:
            e(f"    buffer_store_dwordx4 v[{VB}:{VB+3}], v19, s[16:19], 0 offen{sfl}")
    else:
        e("    s_nop 4")
        for j in range(4):
            e(f"    v_cvt_pk_bf16_f32 v{VB+2*j}, v{T+4*j}, v{T+4*j+1}")
            e(f"    v_cvt_pk_bf16_f32 v{VB+2*j+1}, v{T+4*j+2}, v{T+4*j+3}")
            off = f" offset:{32*j}" if j else ""
            e(f"    buffer_store_dwordx2 v[{VB+2*j}:{VB+2*j+1}], v1, s[16:19], 0 offen{off}{sfl}")
    if not late:
        e("    s_cbranch_scc1 L_fin")
        e("    s_mov_b64 s[16:17], s[20:21]")
        e(f"    v_mov_b32 v{VP}, v{VP+2}")
        e(f"    v_mov_b32 v{VP+1}, v{VP+3}")
        e("    s_branch L_headv")
        e("L_fin:")
    if stamp and probe:
        e("    s_endpgm")
    e("L_exit:")
    if spin:
        e("L_spin:")
        e("    s_memrealtime s[62:63]")
        e("    s_waitcnt lgkmcnt(0)")
        e("    s_sub_u32 s47, s62, s60")
        e(f"    s_cmp_lt_u32 s47, {spin}")
        e("    s_cbranch_scc1 L_spin")
    if stamp:
        if stamp == 2:
            e("    s_waitcnt vmcnt(0)")
        e("    s_memrealtime s[62:63]")
        e("    s_load_dwordx2 s[50:51], s[0:1], 56    ; ws")
        e("    s_lshl_b32 s47, s2, 1" if not probe else "    s_mov_b32 s47, s2")
        e("    s_add_u32 s46, s3, s47")
        e("    s_lshl_b32 s46, s46, 4")
        e("    s_waitcnt vmcnt(0) lgkmcnt(0)")
        e("    s_getreg_b32 s61, hwreg(HW_REG_XCC_ID)")
        e("    v_mov_b32 v12, s60" if not probe else "    v_mov_b32 v12, s56")
        e("    v_mov_b32 v13, s61")
        e("    v_mov_b32 v14, s62" if not probe else "    v_mov_b32 v14, s60")
        e("    v_mov_b32 v15, 0")
        e("    v_mov_b32 v16, s46")
        e("    global_store_dwordx4 v16, v[12:15], s[50:51]")
    e("L_done:")
    e("    s_endpgm")
    e('.section .rodata,"a"')
    e(".p2align 6")
    e(f".amdhsa_kernel {NAME}_kernel")
    e(f"  .amdhsa_next_free_vgpr {NV}")
    e("  .amdhsa_next_free_sgpr 64")
    e(f"  .amdhsa_accum_offset {(NV+3)//4*4}")
    e("  .amdhsa_group_segment_fixed_size 0")
    e("  .amdhsa_kernarg_size 64")
    e("  .amdhsa_user_sgpr_count 2")
    e("  .amdhsa_user_sgpr_kernarg_segment_ptr 1")
    e("  .amdhsa_system_sgpr_workgroup_id_x 1")
    e("  .amdhsa_float_denorm_mode_32 3")
    e(".end_amdhsa_kernel")
    return "\n".join(L) + "\n"


if __name__ == "__main__":
    import sys
    kw = {}
    out = "/dev/stdout"
    for a in sys.argv[1:]:
        k, v = a.split("=")
        if k == "o":
            out = v
            continue
        try:
            v = int(v)
        except ValueError:
            pass
        kw[k] = v
    open(out, "w").write(gen(**kw))
```

```python
NAME = "standalone__low_rank_proj_linformer__sampling"

HEADER = """; Kernarg layout for this problem (64 bytes, ptrs only, base s[0:1]):
"""

DOC = """;
"""


def enc(w):
    return (w & 15) | ((w >> 4) << 22)


def gen(mid=24, wmin=21, wmax=38, sh=3, knee=32, up=120, dn=65, BT=107, psh=3, pc=12, cons=4, t0x=14,
        w="25.22.23.20.21.24.26.27", qearly=1, late=248, stamp=0, spin=0, rep=0, NB=2):
    L = []
    e = L.append
    S, U, M, NR, SUB = 16, 4, 8, 8, 2
    SLOT = 9216
    FLG = S * SLOT
    SCX = FLG + 256
    QL = SCX + 2048
    LDS = QL + 4096
    STR = 4352
    WSB = 1 << 20
    PQ, PK, PV, PE, PF, PO, PW = 64, 66, 68, 70, 72, 74, 78
    e(HEADER.rstrip())
    e(f"; @launch grid=(256,1,1) block=(256,1,1) lds={LDS}")
    e(DOC.rstrip())
    e('.amdgcn_target "amdgcn-amd-amdhsa--gfx950"')
    e(".text")
    e(f".globl {NAME}_kernel")
    e(".p2align 12                                ; keeps the start-up code inside one 4 KiB page")
    e(".p2align 8")
    e(f".type {NAME}_kernel,@function")
    e(f"{NAME}_kernel:")
    if spin or stamp:
        e("    s_memrealtime s[60:61]")
    e("    s_load_dwordx16 s[64:79], s[0:1], 0")
    e("    v_readfirstlane_b32 s3, v0")
    e("    s_cmp_ge_u32 s2, 256")
    e("    s_cbranch_scc1 L_done")
    e("    v_and_b32 v4, 15, v0")
    e("    v_bfe_u32 v5, v0, 4, 2")
    e(f"    v_mov_b32 v7, {FLG}")
    wb = [int(t) - 20 for t in str(w).split(".")]
    b = 0
    while b < 8:
        n = 1
        while b + n < 8 and wb[b + n] == wb[b] + n:
            n += 1
        t = 28 if b == 0 else 29
        if wb[b] == b:
            e(f"    s_and_b32 s{t}, s2, {((1 << n) - 1) << b}")
        else:
            e(f"    s_bfe_u32 s{t}, s2, {(n << 16) | b:#x}")
            if wb[b]:
                e(f"    s_lshl_b32 s{t}, s{t}, {wb[b]}")
        if b:
            e("    s_or_b32 s28, s28, s29" + ("                 ; s28 = pair of heads (bit permutation of the workgroup id)" if b + n == 8 else ""))
        b += n
    e("    s_mov_b32 s19, 0x00020000")
    e("    s_mov_b32 s23, 0x00020000")
    e("    s_cmp_eq_u32 s3, 0")
    e("    s_cbranch_scc1 L_loader")

    VQ = 56

    def qsetup():
        e("    v_bfe_u32 v13, v0, 3, 3")
        e("    s_and_b32 s30, s3, 128                 ; consumer * 128")
        e(f"    v_lshl_add_u32 v{VQ}, v13, 8, s30")
        e("    v_and_b32 v13, 7, v0")
        e(f"    v_lshl_add_u32 v{VQ}, v13, 4, v{VQ}")
        e("    s_lshl_b32 s30, s30, 4")
        e(f"    s_add_u32 m0, s30, {QL}")
        e("    s_lshl_b32 s27, s28, 12")
        e("    s_movk_i32 s18, 4096")

    def qload():
        e(f"    s_add_u32 s16, s{PQ}, s27")
        e(f"    s_addc_u32 s17, s{PQ+1}, 0")
        e(f"    buffer_load_dwordx4 v{VQ}, s[16:19], 0 offen nt lds")
        e("    s_add_u32 m0, m0, 1024")
        e("    s_movk_i32 s29, 2048")
        e(f"    buffer_load_dwordx4 v{VQ}, s[16:19], s29 offen nt lds")

    e("    s_memrealtime s[40:41]")
    e("    v_mov_b32 v8, 0")
    e("    v_mov_b32 v9, 0")
    e(f"    v_mov_b32 v10, {enc(mid):#x}")
    e("    v_mov_b32 v11, 0")
    e("    ds_write_b32 v7, v8")
    e("    ds_write_b128 v7, v[8:11] offset:16")
    e("    ds_write_b64 v7, v[8:9] offset:32")
    if qearly:
        qsetup()
    e("    v_and_b32 v14, 31, v0")
    e("    s_bfe_u32 s29, s2, 0x40003")
    e("    s_lshl_b32 s29, s29, 7")
    e("    v_lshl_add_u32 v14, v14, 11, s29")
    e("    s_cmp_lg_u32 s3, 192")
    e("    s_waitcnt lgkmcnt(0)")
    e("    s_cbranch_scc1 L_meetc")
    e("    s_bitcmp1_b32 s2, 7")
    e(f"    s_cselect_b64 s[20:21], s[{PF}:{PF+1}], s[{PE}:{PE+1}]")
    e("    s_mov_b32 exec_hi, 0")
    e("    global_load_dword v15, v14, s[20:21]")
    e("    s_barrier")
    e("    s_branch L_balance")
    e("L_meetc:")
    if qearly:
        qload()
    e("    s_barrier")
    e("    s_branch L_consumer")
    VD = 16
    VF = 32
    e("; ==================================================== loader")
    e("L_loader:")
    e("    v_lshlrev_b32 v6, 1, v5")
    e("    v_xor_b32 v6, v6, v4")
    e("    v_lshlrev_b32 v6, 4, v6")
    e("    v_lshl_add_u32 v6, v5, 8, v6")
    e("    s_bfe_u32 s24, s2, 0x10007")
    e("    s_lshl_b32 s27, s24, 11")
    e("    s_add_u32 s30, s27, 2048")
    e("    s_sub_u32 s26, 2048, s27")
    e(f"    v_add_u32 v{VD}, s30, v6")
    e("    v_xor_b32 v6, 0x80, v6")
    e(f"    v_add_u32 v{VD+1}, s26, v6")
    e(f"    v_add_u32 v{VD+2}, 8192, v{VD}")
    e(f"    v_add_u32 v{VD+3}, 8192, v{VD+1}")
    e("    s_lshl_b32 s28, s28, 20")
    e("    s_sub_u32 s28, s28, 2048")
    e("    s_subb_u32 s27, 0, 0")
    e("    s_mov_b32 s18, 0x100800")
    e("    s_mov_b32 m0, 0")
    e("    v_lshrrev_b32 v4, 2, v0")
    e("    v_and_b32 v5, 2, v5")
    e("    v_xor_b32 v5, v5, v0")
    e("    v_xor_b32 v5, s24, v5")
    e(f"    v_lshlrev_b32 v{VF}, 12, v4")
    e("    v_and_b32 v6, 1, v5")
    e(f"    v_lshl_add_u32 v{VF}, v6, 4, v{VF}")
    e("    v_bfe_u32 v6, v5, 1, 1")
    e(f"    v_lshl_add_u32 v{VF}, v6, 6, v{VF}")
    e("    s_mov_b32 s22, 65536")
    e("    s_waitcnt lgkmcnt(0)")
    e(f"    s_add_u32 s16, s{PK}, s28")
    e(f"    s_addc_u32 s17, s{PK+1}, s27")

    def dtab(n):
        o = (n >> 1) << 15
        return [f"v_add_u32 v{VD+2*n}, {o}, v{VD+2*(n&1)}", f"v_add_u32 v{VD+2*n+1}, {o}, v{VD+2*(n&1)+1}"]

    def dload(n, so):
        o = (n & 3) * 1024
        off = f" offset:{o}" if o else ""
        v = VD + 2 * (n >> 2) + ((n >> 1) & 1)
        e(f"    buffer_load_dwordx4 v{v}, s[16:19], {so} offen{off} nt lds")

    pre = {3: [f"s_mov_b64 s[20:21], s[{PE}:{PE+1}]"]}
    for c in range(1, 4):
        pre.setdefault(8 * c - 5, []).extend(dtab(2 * c))
        pre.setdefault(8 * c - 1, []).extend(dtab(2 * c + 1) + [f"v_add_u32 v{VF+c}, {c << 8}, v{VF}"])
    for n in range(8 * NB):
        dload(n, "0")
        if n & 3 == 3:
            e("    s_add_u32 m0, m0, 4096")
            f = pre.pop(n)
            if n & 7 == 7:
                e("    " + f.pop(0))
                e(f"    buffer_load_dwordx4 v{VF + n//8}, s[20:23], 0 offen lds")
                e("    s_add_u32 m0, m0, 1024")
            for x in f:
                e("    " + x)
    for n in sorted(pre):
        for x in pre[n]:
            e("    " + x)
    e("    s_mov_b32 s31, 0")
    e("    s_mov_b32 s32, 0")
    e("    s_mov_b32 s33, 0")
    e(f"    s_mov_b32 s36, {enc(mid):#x}")
    e("    s_mov_b32 s37, 0xc0000f")
    e("    s_mov_b32 s38, 0xffff8001")
    e(f"    s_add_u32 s24, s{PV}, s28")
    e(f"    s_addc_u32 s25, s{PV+1}, s27")
    n_last = 8 * NB - 1
    e(f"    v_mov_b32 v12, {(n_last + n_last // 8) << 4}")
    e("    s_barrier")
    e(f"    s_branch L_p{8*NB}")
    e("L_body:")
    pubd = 0
    for n in range(8 * U):
        issued = n + n // 8
        e(f"L_p{n}:")
        e("    s_getreg_b32 s40, hwreg(HW_REG_IB_STS)")
        e("    s_and_b32 s40, s40, s37")
        e("    s_cmp_ge_u32 s40, s36")
        e(f"    s_cbranch_scc1 L_p{n}")
        dload(n, "s32")
        if n & 3 == 3:
            e("    s_add_u32 m0, m0, 4096")
            e(f"    v_add_u32 v12, {(issued - pubd) << 4}, v12")
            pubd = issued
            if n & 7 == 7:
                e(f"    buffer_load_dwordx4 v{VF + n//8}, s[20:23], s33 offen lds")
                e("    s_add_u32 m0, m0, 1024")
                if n != 8 * U - 1:
                    e("    s_waitcnt lgkmcnt(0)")
                    e("    v_readfirstlane_b32 s36, v10")
            e("    v_add_u32 v11, s40, v12")
            e("    ds_write_b32 v7, v11")
            if n == 8 * U - 5:
                e("    ds_read_b128 v[36:39], v7 offset:16")
            elif n & 7 == 3:
                e("    ds_read_b32 v10, v7 offset:24          ; window")
    e(f"    v_add_u32 v12, {(9*U - pubd) << 4}, v12")
    e(f"    s_add_u32 s31, s31, {U}")
    e("    s_cmp_eq_u32 s31, 256")
    e("    s_cbranch_scc1 L_drain")
    e(f"    s_cmp_eq_u32 m0, {SLOT*S}")
    e("    s_cselect_b32 m0, 0, m0")
    e("    s_bitcmp1_b32 s31, 7")
    e("    s_cselect_b64 s[16:17], s[24:25], s[16:17]")
    e(f"    s_cselect_b64 s[20:21], s[{PF}:{PF+1}], s[20:21]")
    e("    s_bfe_u32 s30, s31, 0x40002")
    e("    s_cselect_b32 s38, s38, 0xffff8000")
    e("L_chkfree:")
    e("    s_waitcnt lgkmcnt(0)")
    e("    v_min_u32 v36, v36, v37")
    e("    v_readfirstlane_b32 s36, v38")
    e("    v_readfirstlane_b32 s29, v36")
    e("    v_readfirstlane_b32 s39, v39")
    e(f"    s_add_u32 s29, s29, {S - U}")
    e("    s_cmp_gt_u32 s31, s29")
    e("    s_cbranch_scc1 L_full")
    e("    s_add_u32 s30, s30, s39")
    e("    s_ff0_i32_b32 s29, s38")
    e("    s_bitcmp1_b32 s38, s30")
    e("    s_cselect_b32 s30, s29, s30")
    e("    s_bitset1_b32 s38, s30")
    if t0x:
        e("    s_bitcmp1_b32 s30, 0")
        e(f"    s_cselect_b32 s29, {t0x}, 0")
        e("    s_xor_b32 s30, s30, s29")
    e("    s_bfe_u32 s29, s30, 0x10000")
    e("    s_lshl_b32 s32, s29, 12")
    e("    s_bfe_u32 s29, s30, 0x20001")
    e("    s_lshl_b32 s29, s29, 17")
    e("    s_or_b32 s32, s32, s29")
    e("    s_bfe_u32 s29, s30, 0x10003")
    e("    s_lshl_b32 s29, s29, 14")
    e("    s_or_b32 s32, s32, s29")
    e("    s_lshr_b32 s33, s32, 7")
    e("    s_bfe_u32 s29, s31, 0x10006")
    e("    s_lshl_b32 s29, s29, 19")
    e("    s_or_b32 s32, s32, s29")
    e("    s_branch L_body")
    e("L_full:")
    e("    s_getreg_b32 s40, hwreg(HW_REG_IB_STS)")
    e("    s_and_b32 s40, s40, s37")
    e("    v_add_u32 v11, s40, v12")
    e("    ds_write_b32 v7, v11")
    e("    ds_read_b128 v[36:39], v7 offset:16")
    e("    s_branch L_chkfree")
    e("L_drain:")
    for n in (36, 27, 18, 9):
        e(f"    v_mov_b32 v11, {(2304 - n) << 4}")
        e(f"    s_waitcnt vmcnt({n})")
        e("    ds_write_b32 v7, v11")
    e("    s_waitcnt vmcnt(0)")
    e("    s_barrier")
    e("    s_endpgm")

    def decode(d):
        e(f"    s_lshr_b32 s29, s{d}, 18")
        e(f"    s_and_b32 s30, s{d}, 15")
        e("    s_or_b32 s29, s29, s30")
        e(f"    s_bfe_u32 s{d}, s{d}, 0xe0004")
        e(f"    s_sub_u32 s{d}, s{d}, s29")

    e("; ==================================================== balancer")
    e("L_balance:")
    e(f"    v_and_b32 v9, {NR-1}, v0")
    e(f"    v_mul_u32_u24 v9, {STR}, v9")
    e(f"    v_add_u32 v9, {WSB}, v9")
    e(f"    s_mul_i32 s58, s2, {STR}")
    e(f"    s_add_u32 s58, s58, {WSB + STR*NR}")
    e(f"    s_mov_b32 s31, {9*M}")
    e(f"    s_mov_b32 s33, {M}")
    e("    s_mov_b32 s52, 0")
    e("    s_mov_b32 s53, 0")
    e("    s_mov_b32 s55, 0")
    e("    s_mov_b32 s57, 0")
    e("    s_mov_b32 exec_lo, 0xffff")
    e("    s_sub_u32 s40, s40, 300")
    e("L_step:")
    e("    ds_read_b32 v8, v7")
    e("    s_waitcnt lgkmcnt(0)")
    e("    v_readfirstlane_b32 s28, v8")
    decode(28)
    e("    s_cmp_lt_u32 s28, s31")
    e("    s_cbranch_scc1 L_step")
    e("    s_memrealtime s[44:45]")
    e(f"    s_and_b32 s34, s33, {M-1}")
    e(f"    s_cmp_ge_u32 s33, {256 - M}")
    e("    s_cselect_b32 s34, -1, s34")
    e("    s_waitcnt lgkmcnt(0)")
    e("    s_sub_u32 s54, s44, s40")
    e(f"    s_cmp_lg_u32 s34, {cons}")
    e("    s_cbranch_scc1 L_nonotes")
    e(f"    s_cmp_lt_u32 s33, {2*M}")
    e("    s_cbranch_scc1 L_nonotes")
    e("    s_waitcnt vmcnt(0)")
    e("    v_subrev_u32 v12, s40, v12")
    e("    v_min_u32 v12, s55, v12")
    e("    s_nop 1")
    for d in (1, 2, 4):
        e(f"    v_add_u32_dpp v12, v12, v12 row_ror:{d} row_mask:0xf bank_mask:0xf")
        e("    s_nop 1")
    e("    v_readfirstlane_b32 s38, v12")
    e("    s_lshr_b32 s38, s38, 3")
    e("    s_sub_u32 s35, s59, s38")
    e("    s_sub_u32 s39, s38, s52")
    e("    s_mov_b32 s52, s38")
    e(f"    s_sub_u32 s56, s33, {M + cons}")
    e("    s_sub_u32 s38, s39, s53")
    e(f"    s_max_i32 s38, s38, {-pc}")
    e(f"    s_min_i32 s38, s38, {pc}")
    e(f"    s_add_u32 s38, s38, {1 << (psh - 1)}")
    e(f"    s_ashr_i32 s38, s38, {psh}")
    e("    s_add_u32 s38, s38, s53")
    e(f"    s_cmp_lt_u32 s33, {4*M}")
    e("    s_cselect_b32 s53, s39, s38")
    e("L_nonotes:")
    e(f"    s_cmp_lt_u32 s33, {3*M + cons}")
    e("    s_cbranch_scc1 L_noset")
    e("    s_sub_u32 s38, s33, s56")
    e("    s_mul_i32 s38, s38, s53")
    e("    s_lshr_b32 s38, s38, 3")
    e("    s_add_u32 s38, s38, s52")
    e("    s_sub_u32 s38, s54, s38")
    e(f"    s_mul_i32 s39, s57, {BT}")
    e("    s_min_i32 s36, s35, s38")
    e("    s_sub_u32 s36, s36, s39")
    e("    s_sub_u32 s39, s38, s39")
    e(f"    s_cmp_gt_i32 s36, {up}")
    e("    s_addc_u32 s57, s57, 0")
    e(f"    s_cmp_lt_i32 s39, {-dn}")
    e("    s_subb_u32 s57, s57, 0")
    e("    s_max_i32 s57, s57, 0")
    e("    s_min_i32 s57, s57, 15")
    e(f"    s_sub_u32 s39, s38, {knee}")
    e("    s_ashr_i32 s39, s39, 1")
    e(f"    s_add_u32 s39, s39, {knee}")
    e("    s_min_i32 s38, s38, s39")
    e(f"    s_add_u32 s38, s38, {(mid << sh) + (1 << (sh-1))}")
    e(f"    s_ashr_i32 s38, s38, {sh}")
    e(f"    s_max_i32 s38, s38, {wmin}")
    e(f"    s_min_i32 s38, s38, {wmax}")
    e("    s_lshl_b32 s39, s38, 18")
    e("    s_or_b32 s38, s38, s39")
    e("    s_and_b32 s38, s38, 0xc0000f")
    e("    v_mov_b32 v10, s38")
    e("    v_mov_b32 v11, s57")
    e("    ds_write_b64 v7, v[10:11] offset:24")
    e("L_noset:")
    e("    s_cmp_lg_u32 s34, 0")
    e("    s_cbranch_scc1 L_next")
    e("    s_mov_b32 s59, s55")
    e("    s_mov_b32 s55, s54")
    e(f"    s_cmp_ge_u32 s2, {NR}")
    e("    s_cbranch_scc1 L_nowrite")
    e("    v_mov_b32 v16, s44")
    e("    v_mov_b32 v17, s44")
    e("    v_lshl_add_u32 v18, v4, 3, s58")
    e(f"    global_store_dwordx2 v18, v[16:17], s[{PW}:{PW+1}] sc0 sc1")
    e(f"    s_add_u32 s58, s58, {STR*NR}")
    e("L_nowrite:")
    e(f"    s_cmp_eq_u32 s33, {M}")
    e("    s_cbranch_scc1 L_noread")
    e(f"    global_load_dword v12, v9, s[{PW}:{PW+1}] sc0 sc1")
    e("L_noread:")
    e(f"    v_add_u32 v9, {STR*NR}, v9")
    e("L_next:")
    e(f"    s_add_u32 s31, s31, {9*SUB}")
    e(f"    s_add_u32 s33, s33, {SUB}")
    e("    s_cmp_lt_u32 s33, 252")
    e("    s_cbranch_scc1 L_step")
    e("    s_endpgm")
    VA = 8
    VT = 14
    VE = 20
    VB = 24
    VACC = 40
    VP = 66
    VO = 72
    VX = 76
    VS = 92
    NV = 124
    e("; ==================================================== consumers")
    e("L_consumer:")
    if not qearly:
        qsetup()
        qload()
    e("    v_and_b32 v0, 63, v0")
    e(f"    s_add_u32 s29, s30, {QL}")
    e(f"    v_lshl_add_u32 v{VQ+8}, v13, 7, s29")
    e(f"    v_lshl_add_u32 v{VQ+8}, v5, 3, v{VQ+8}")
    e("    s_lshr_b32 s3, s3, 7")
    e("    s_lshl_b32 s29, s3, 7")
    e("    v_lshl_add_u32 v19, v13, 8, s29")
    e("    v_lshrrev_b32 v13, 3, v4")
    e("    v_lshl_add_u32 v19, v13, 6, v19")
    e("    v_and_b32 v13, 1, v5")
    e("    v_lshl_add_u32 v19, v13, 5, v19")
    e("    v_lshrrev_b32 v6, 1, v5")
    e("    v_lshl_add_u32 v19, v6, 4, v19")
    e("    v_cmp_lt_u32 vcc, 7, v4")
    e("    v_bfe_u32 v6, v0, 2, 2")
    e("    v_lshl_add_u32 v12, v5, 3, v6")
    e("    v_lshl_add_u32 v6, v13, 2, v6")
    e("    s_lshl_b32 s29, s3, 2")
    e("    v_xor_b32 v6, s29, v6")
    e("    v_lshlrev_b32 v6, 5, v6")
    e("    v_lshl_add_u32 v6, v12, 8, v6")
    e("    v_and_b32 v13, 3, v0")
    e(f"    v_lshl_add_u32 v{VA}, v13, 3, v6")
    for j in range(1, 4):
        e(f"    v_xor_b32 v{VA+j}, {32*j}, v{VA}")
    e("    v_lshrrev_b32 v13, 2, v4")
    e("    v_and_b32 v13, 2, v13")
    e("    v_xor_b32 v13, v13, v5")
    e("    v_lshl_add_u32 v13, v4, 2, v13")
    e(f"    v_lshlrev_b32 v{VA+4}, 4, v13")
    e(f"    v_add_u32 v{VA+4}, 8192, v{VA+4}")
    e("    v_add_u32 v3, s29, v7")
    e("    v_xor_b32 v2, 4, v3")
    e(f"    s_add_u32 s16, s{PO}, s27")
    e(f"    s_addc_u32 s17, s{PO+1}, 0")
    e("    s_add_u32 s20, s16, 2048")
    e("    s_addc_u32 s21, s17, 0")
    e("    s_movk_i32 s18, 2048")
    e("    s_movk_i32 s22, 2048")
    e("    s_mov_b32 s31, 0")
    e("    s_mov_b32 s32, 9")
    e("    s_mov_b32 s33, 0")
    e("    s_mov_b32 s34, 0")
    e("    s_branch L_headk")
    e("L_fold:")
    e("    s_cmp_eq_u32 s28, 60")
    e("    s_nop 3")
    for i in range(16):
        t = VX + 2 * (i & 3)
        e(f"    v_cvt_f64_f32 v[{t}:{t+1}], v{VACC+i}")
        e(f"    v_mov_b32 v{VACC+i}, 0")
        e(f"    v_add_f64 v[{VS+2*i}:{VS+2*i+1}], v[{VS+2*i}:{VS+2*i+1}], v[{t}:{t+1}]")
    e("    s_cbranch_scc0 L_folded")
    for i in range(16):
        e(f"    v_cvt_f32_f64 v{VACC+i}, v[{VS+2*i}:{VS+2*i+1}]")
    e("L_folded:")
    e("    s_bitcmp0_b32 s31, 7")
    e("    s_cbranch_scc1 L_k")
    e(f"    s_cmp_lg_u32 s31, {late}")
    e("    s_cbranch_scc1 L_v")
    e(f"    buffer_store_dwordx4 v[{VO}:{VO+3}], v19, s[16:19], 0 offen")
    e("    s_branch L_v")

    def seg(tag, isK):
        for i in range(8):
            e(f"    v_mov_b64 v[{VACC+2*i}:{VACC+2*i+1}], 0")
        for i in range(16):
            e(f"    v_mov_b64 v[{VS+2*i}:{VS+2*i+1}], 0")
        e(f"L_{tag}:")
        for j in range(5):
            e(f"    v_add_u32 v{VT+j}, s34, v{VA+j}")
        e("    s_add_u32 s31, s31, 1")
        e("    v_mov_b32 v13, s31")
        e("    s_cmp_ge_u32 s33, s32")
        e(f"    s_cbranch_scc1 L_{tag}_go")
        if not isK:
            e("    s_cmp_lg_u32 s31, 256")
            e(f"    s_cbranch_scc1 L_{tag}_poll")
            e("    s_barrier")
            e(f"    s_branch L_{tag}_go")
        e(f"L_{tag}_poll:")
        e("    ds_read_b32 v6, v7")
        e("    s_waitcnt lgkmcnt(0)")
        e("    v_readfirstlane_b32 s33, v6")
        decode(33)
        e("    s_cmp_lt_u32 s33, s32")
        e(f"    s_cbranch_scc1 L_{tag}_poll")
        e(f"L_{tag}_go:")
        e(f"    ds_read_b128 v[{VE}:{VE+3}], v{VT+4}")
        for j in range(4):
            e(f"    ds_read_b64_tr_b16 v[{VB+4*j}:{VB+4*j+1}], v{VT+j}")
            e(f"    ds_read_b64_tr_b16 v[{VB+4*j+2}:{VB+4*j+3}], v{VT+j} offset:1024")
        e("    ds_write_b32 v3, v13 offset:16")
        e("    s_add_u32 s32, s32, 9")
        e(f"    s_add_u32 s34, s34, {SLOT}")
        e(f"    s_cmp_eq_u32 s34, {SLOT*S}")
        e("    s_cselect_b32 s34, 0, s34")
        e("    s_and_b32 s28, s31, 3")
        for j in range(4):
            e(f"    s_waitcnt lgkmcnt({7-2*j})")
            a = VACC + 4 * j
            t = VB + 4 * j
            if isK:
                e(f"    v_mfma_f32_16x16x32_bf16 v[{a}:{a+3}], v[{t}:{t+3}], v[{VE}:{VE+3}], v[{a}:{a+3}]")
            else:
                e(f"    v_mfma_f32_16x16x32_bf16 v[{a}:{a+3}], v[{VE}:{VE+3}], v[{t}:{t+3}], v[{a}:{a+3}]")
        e(f"    s_cbranch_scc1 L_{tag}")
        e("    s_and_b32 s28, s31, 63")
        e("    s_cbranch_scc1 L_fold")

    e("L_headk:")
    seg("k", True)
    T = VX
    e("    s_waitcnt vmcnt(0)")
    for j in range(4):
        e(f"    ds_read_b64 v[{VQ+2*j}:{VQ+2*j+1}], v{VQ+8} offset:{32*j}")
    e(f"    v_add_u32 v{VQ+8}, 1024, v{VQ+8}")
    for j in range(4):
        e(f"    v_cvt_pk_bf16_f32 v{T+2*j}, v{VACC+4*j}, v{VACC+4*j+1}")
        e(f"    v_cvt_pk_bf16_f32 v{T+2*j+1}, v{VACC+4*j+2}, v{VACC+4*j+3}")
    e("    s_lshl_b32 s28, s3, 10")
    e(f"    s_add_u32 s28, s28, {SCX - 8192}")
    e("    s_waitcnt lgkmcnt(0)")
    e(f"    v_mfma_f32_16x16x32_bf16 v[{T+8}:{T+11}], v[{T}:{T+3}], v[{VQ}:{VQ+3}], 0")
    e(f"    v_mfma_f32_16x16x32_bf16 v[{T+8}:{T+11}], v[{T+4}:{T+7}], v[{VQ+4}:{VQ+7}], v[{T+8}:{T+11}]")
    e(f"    v_add_u32 v14, s28, v{VA+4}")
    e("    v_xor_b32 v15, 16, v0")
    e("    v_xor_b32 v16, 32, v0")
    e("    v_lshlrev_b32 v15, 2, v15")
    e("    v_lshlrev_b32 v16, 2, v16")
    e("    s_xor_b32 s29, s3, 1")
    e("    s_lshl_b32 s29, s29, 10")
    e(f"    s_add_u32 s29, s29, {SCX - 8192}")
    e(f"    v_add_u32 v17, s29, v{VA+4}")
    e(f"    ds_write_b128 v14, v[{T+8}:{T+11}]")
    e("    ds_write_b32 v3, v13 offset:32")
    e("L_scpoll:")
    e("    ds_read_b32 v6, v2 offset:32")
    e("    s_waitcnt lgkmcnt(0)")
    e("    v_readfirstlane_b32 s28, v6")
    e("    s_cmp_lt_u32 s28, s31")
    e("    s_cbranch_scc1 L_scpoll")
    e(f"    ds_read_b128 v[{T}:{T+3}], v17")
    e("    s_waitcnt lgkmcnt(0)")
    for i in range(4):
        e(f"    v_add_f32 v{T+i}, v{T+i}, v{T+8+i}")

    def rnd():
        e(f"    v_cvt_pk_bf16_f32 v{T+4}, v{T}, v{T+1}")
        e(f"    v_cvt_pk_bf16_f32 v{T+5}, v{T+2}, v{T+3}")
        e(f"    v_lshlrev_b32 v{T}, 16, v{T+4}")
        e(f"    v_and_b32 v{T+1}, 0xffff0000, v{T+4}")
        e(f"    v_lshlrev_b32 v{T+2}, 16, v{T+5}")
        e(f"    v_and_b32 v{T+3}, 0xffff0000, v{T+5}")
    rnd()
    for i in range(4):
        e(f"    v_mul_f32 v{T+i}, 0x3db504f3, v{T+i}         ; 128^-0.5")
    rnd()
    e(f"    v_max_f32 v{T+4}, v{T}, v{T+1}")
    e(f"    v_max3_f32 v{T+4}, v{T+2}, v{T+3}, v{T+4}")
    e(f"    ds_bpermute_b32 v{T+5}, v15, v{T+4}")
    e("    s_waitcnt lgkmcnt(0)")
    e(f"    v_max_f32 v{T+4}, v{T+4}, v{T+5}")
    e(f"    ds_bpermute_b32 v{T+5}, v16, v{T+4}")
    e("    s_waitcnt lgkmcnt(0)")
    e(f"    v_max_f32 v{T+4}, v{T+4}, v{T+5}")
    for i in range(4):
        e(f"    v_sub_f32 v{T+i}, v{T+i}, v{T+4}")
    for i in range(4):
        e(f"    v_mul_f32 v{T+i}, 0x3fb8aa3b, v{T+i}         ; log2(e)")
    for i in range(4):
        e(f"    v_exp_f32 v{T+i}, v{T+i}")
    e("    s_nop 0")
    e(f"    v_add_f32 v{T+4}, v{T}, v{T+1}")
    e(f"    v_add_f32 v{T+5}, v{T+2}, v{T+3}")
    e(f"    v_add_f32 v{T+4}, v{T+4}, v{T+5}")
    e(f"    ds_bpermute_b32 v{T+5}, v15, v{T+4}")
    e("    s_waitcnt lgkmcnt(0)")
    e(f"    v_add_f32 v{T+4}, v{T+4}, v{T+5}")
    e(f"    ds_bpermute_b32 v{T+5}, v16, v{T+4}")
    e("    s_waitcnt lgkmcnt(0)")
    e(f"    v_add_f32 v{T+4}, v{T+4}, v{T+5}")
    e(f"    v_rcp_f32 v{T+4}, v{T+4}")
    e(f"    v_mov_b64 v[{VP}:{VP+1}], v[{VP+2}:{VP+3}]")
    for i in range(4):
        e(f"    v_mul_f32 v{T+i}, v{T+i}, v{T+4}")
    e(f"    v_cvt_pk_bf16_f32 v{VP+2}, v{T}, v{T+1}")
    e(f"    v_cvt_pk_bf16_f32 v{VP+3}, v{T+2}, v{T+3}")
    e("    s_cmp_eq_u32 s31, 64")
    e("    s_cbranch_scc1 L_headk")
    e("L_headv:")
    seg("v", False)
    e("    s_cmp_eq_u32 s31, 256")
    for j in range(4):
        e(f"    v_cvt_pk_bf16_f32 v{VB+2*j}, v{VACC+4*j}, v{VACC+4*j+1}")
        e(f"    v_cvt_pk_bf16_f32 v{VB+2*j+1}, v{VACC+4*j+2}, v{VACC+4*j+3}")
    for j in range(4):
        e(f"    v_mfma_f32_16x16x16_bf16 v[{T+4*j}:{T+4*j+3}], v[{VB+2*j}:{VB+2*j+1}], v[{VP}:{VP+1}], 0")
    e("    s_nop 6")
    for i in range(8):
        e(f"    v_cndmask_b32 v{T+i}, v{T+i}, v{T+8+i}, vcc")
    for j in range(2):
        e(f"    v_cvt_pk_bf16_f32 v{VO+2*j}, v{T+4*j}, v{T+4*j+1}")
    for j in range(2):
        e(f"    v_cvt_pk_bf16_f32 v{VO+2*j+1}, v{T+4*j+2}, v{T+4*j+3}")
    e(f"    v_permlane16_swap_b32 v{VO}, v{VO+2}")
    e(f"    v_mov_b64 v[{VP}:{VP+1}], v[{VP+2}:{VP+3}]")
    e(f"    v_permlane16_swap_b32 v{VO+1}, v{VO+3}")
    e("    s_cbranch_scc0 L_headv")
    e(f"    buffer_store_dwordx4 v[{VO}:{VO+3}], v19, s[20:23], 0 offen")
    if spin:
        e("    s_waitcnt vmcnt(0)")
        e("    s_memrealtime s[62:63]")
        e("    s_waitcnt lgkmcnt(0)")
        e("    s_sub_u32 s46, s62, s60")
        e(f"    s_mul_i32 s46, s46, {spin}")
        e("    s_min_u32 s46, s46, 200000")
        e("L_spin:")
        e("    s_memrealtime s[62:63]")
        e("    s_waitcnt lgkmcnt(0)")
        e("    s_sub_u32 s47, s62, s60")
        e("    s_cmp_lt_u32 s47, s46")
        e("    s_cbranch_scc1 L_spin")
    if stamp:
        if stamp == 2:
            e("    s_waitcnt vmcnt(0)")
        e("    s_memrealtime s[62:63]")
        e("    s_lshl_b32 s47, s2, 1")
        e("    s_add_u32 s46, s3, s47")
        e("    s_lshl_b32 s46, s46, 4")
        e("    s_waitcnt vmcnt(0) lgkmcnt(0)")
        e("    s_getreg_b32 s61, hwreg(HW_REG_XCC_ID)")
        e("    v_mov_b32 v12, s60")
        e("    v_mov_b32 v13, s61")
        e("    v_mov_b32 v14, s62")
        e("    v_mov_b32 v15, 0")
        e("    v_mov_b32 v16, s46")
        e(f"    global_store_dwordx4 v16, v[12:15], s[{PW}:{PW+1}]")
    e("L_done:")
    e("    s_endpgm")
    e('.section .rodata,"a"')
    e(".p2align 6")
    e(f".amdhsa_kernel {NAME}_kernel")
    e(f"  .amdhsa_next_free_vgpr {NV}")
    e("  .amdhsa_next_free_sgpr 80")
    e(f"  .amdhsa_accum_offset {(NV+3)//4*4}")
    e("  .amdhsa_group_segment_fixed_size 0")
    e("  .amdhsa_kernarg_size 64")
    e("  .amdhsa_user_sgpr_count 2")
    e("  .amdhsa_user_sgpr_kernarg_segment_ptr 1")
    e("  .amdhsa_system_sgpr_workgroup_id_x 1")
    e("  .amdhsa_float_denorm_mode_32 3")
    e(".end_amdhsa_kernel")
    return "\n".join(L) + "\n"


if __name__ == "__main__":
    import sys
    kw = {}
    out = "/dev/stdout"
    for a in sys.argv[1:]:
        k, v = a.split("=")
        if k == "o":
            out = v
            continue
        try:
            v = int(v)
        except ValueError:
            pass
        kw[k] = v
    open(out, "w").write(gen(**kw))
```

```python
NAME = "standalone__low_rank_proj_linformer__sampling"

HEADER = """; Kernarg layout for this problem (64 bytes, ptrs only, base s[0:1]):
"""

DOC = """;
"""


def enc(w):
    return (w & 15) | ((w >> 4) << 22)


def gen(mid=24, wmin=21, wmax=38, sh=3, knee=32, up=120, dn=65, BT=107, psh=3, pc=12, cons=4, t0x=14,
        w="25.22.23.20.21.24.26.27", qearly=1, late=248, stamp=0, spin=0, rep=0, NB=2, probe=0):
    L = []
    e = L.append
    S, U, M, NR, SUB = 16, 4, 8, 8, 2
    SLOT = 9216
    FLG = S * SLOT
    SCX = FLG + 256
    QL = SCX + 2048
    LDS = QL + 4096
    STR = 4352
    WSB = 1 << 20
    PQ, PK, PV, PE, PF, PO, PW = 64, 66, 68, 70, 72, 74, 78
    e(HEADER.rstrip())
    e(f"; @launch grid=(256,1,1) block=(256,1,1) lds={LDS}")
    e(DOC.rstrip())
    e('.amdgcn_target "amdgcn-amd-amdhsa--gfx950"')
    e(".text")
    e(f".globl {NAME}_kernel")
    e(".p2align 12                                ; keeps the start-up code inside one 4 KiB page")
    e(".p2align 8")
    e(f".type {NAME}_kernel,@function")
    e(f"{NAME}_kernel:")
    if spin or stamp:
        e("    s_memrealtime s[60:61]")
    e("    s_load_dwordx16 s[64:79], s[0:1], 0")
    e("    v_readfirstlane_b32 s3, v0")
    e("    s_cmp_ge_u32 s2, 256")
    e("    s_cbranch_scc1 L_done")
    e("    v_and_b32 v4, 15, v0")
    e("    v_bfe_u32 v5, v0, 4, 2")
    e(f"    v_mov_b32 v7, {FLG}")
    wb = [int(t) - 20 for t in str(w).split(".")]
    b = 0
    while b < 8:
        n = 1
        while b + n < 8 and wb[b + n] == wb[b] + n:
            n += 1
        t = 28 if b == 0 else 29
        if wb[b] == b:
            e(f"    s_and_b32 s{t}, s2, {((1 << n) - 1) << b}")
        else:
            e(f"    s_bfe_u32 s{t}, s2, {(n << 16) | b:#x}")
            if wb[b]:
                e(f"    s_lshl_b32 s{t}, s{t}, {wb[b]}")
        if b:
            e("    s_or_b32 s28, s28, s29" + ("                 ; s28 = pair of heads (bit permutation of the workgroup id)" if b + n == 8 else ""))
        b += n
    e("    s_mov_b32 s19, 0x00020000")
    e("    s_mov_b32 s23, 0x00020000")
    e("    s_cmp_eq_u32 s3, 0")
    e("    s_cbranch_scc1 L_loader")

    VQ = 56

    def qsetup():
        e("    v_bfe_u32 v13, v0, 3, 3")
        e("    s_and_b32 s30, s3, 128                 ; consumer * 128")
        e(f"    v_lshl_add_u32 v{VQ}, v13, 8, s30")
        e("    v_and_b32 v13, 7, v0")
        e(f"    v_lshl_add_u32 v{VQ}, v13, 4, v{VQ}")
        e("    s_lshl_b32 s30, s30, 4")
        e(f"    s_add_u32 m0, s30, {QL}")
        e("    s_lshl_b32 s27, s28, 12")
        e("    s_movk_i32 s18, 4096")

    def qload():
        e(f"    s_add_u32 s16, s{PQ}, s27")
        e(f"    s_addc_u32 s17, s{PQ+1}, 0")
        e(f"    buffer_load_dwordx4 v{VQ}, s[16:19], 0 offen nt lds")
        e("    s_add_u32 m0, m0, 1024")
        e("    s_movk_i32 s29, 2048")
        e(f"    buffer_load_dwordx4 v{VQ}, s[16:19], s29 offen nt lds")

    e("    s_memrealtime s[40:41]")
    e("    v_mov_b32 v8, 0")
    e("    v_mov_b32 v9, 0")
    e(f"    v_mov_b32 v10, {enc(mid):#x}")
    e("    v_mov_b32 v11, 0")
    e("    ds_write_b32 v7, v8")
    e("    ds_write_b128 v7, v[8:11] offset:16")
    e("    ds_write_b64 v7, v[8:9] offset:32")
    if qearly:
        qsetup()
    e("    v_and_b32 v14, 31, v0")
    e("    s_bfe_u32 s29, s2, 0x40003")
    e("    s_lshl_b32 s29, s29, 7")
    e("    v_lshl_add_u32 v14, v14, 11, s29")
    e("    s_cmp_lg_u32 s3, 192")
    e("    s_waitcnt lgkmcnt(0)")
    e("    s_cbranch_scc1 L_meetc")
    e("    s_bitcmp1_b32 s2, 7")
    e(f"    s_cselect_b64 s[20:21], s[{PF}:{PF+1}], s[{PE}:{PE+1}]")
    e("    s_mov_b32 exec_hi, 0")
    e("    global_load_dword v15, v14, s[20:21]")
    e("    s_barrier")
    e("    s_branch L_balance")
    e("L_meetc:")
    if qearly:
        qload()
    e("    s_barrier")
    e("    s_branch L_consumer")
    VD = 16
    VF = 32
    e("; ==================================================== loader")
    e("L_loader:")
    e("    v_lshlrev_b32 v6, 1, v5")
    e("    v_xor_b32 v6, v6, v4")
    e("    v_lshlrev_b32 v6, 4, v6")
    e("    v_lshl_add_u32 v6, v5, 8, v6")
    e("    s_bfe_u32 s24, s2, 0x10007")
    e("    s_lshl_b32 s27, s24, 11")
    e("    s_add_u32 s30, s27, 2048")
    e("    s_sub_u32 s26, 2048, s27")
    e(f"    v_add_u32 v{VD}, s30, v6")
    e("    v_xor_b32 v6, 0x80, v6")
    e(f"    v_add_u32 v{VD+1}, s26, v6")
    e(f"    v_add_u32 v{VD+2}, 8192, v{VD}")
    e(f"    v_add_u32 v{VD+3}, 8192, v{VD+1}")
    e("    s_lshl_b32 s28, s28, 20")
    e("    s_sub_u32 s28, s28, 2048")
    e("    s_subb_u32 s27, 0, 0")
    e("    s_mov_b32 s18, 0x100800")
    e("    s_mov_b32 m0, 0")
    e("    v_lshrrev_b32 v4, 2, v0")
    e("    v_and_b32 v5, 2, v5")
    e("    v_xor_b32 v5, v5, v0")
    e("    v_xor_b32 v5, s24, v5")
    e(f"    v_lshlrev_b32 v{VF}, 12, v4")
    e("    v_and_b32 v6, 1, v5")
    e(f"    v_lshl_add_u32 v{VF}, v6, 4, v{VF}")
    e("    v_bfe_u32 v6, v5, 1, 1")
    e(f"    v_lshl_add_u32 v{VF}, v6, 6, v{VF}")
    e("    s_mov_b32 s22, 65536")
    e("    s_waitcnt lgkmcnt(0)")
    e(f"    s_add_u32 s16, s{PK}, s28")
    e(f"    s_addc_u32 s17, s{PK+1}, s27")

    def dtab(n):
        o = (n >> 1) << 15
        return [f"v_add_u32 v{VD+2*n}, {o}, v{VD+2*(n&1)}", f"v_add_u32 v{VD+2*n+1}, {o}, v{VD+2*(n&1)+1}"]

    def dload(n, so):
        o = (n & 3) * 1024
        off = f" offset:{o}" if o else ""
        v = VD + 2 * (n >> 2) + ((n >> 1) & 1)
        e(f"    buffer_load_dwordx4 v{v}, s[16:19], {so} offen{off} nt lds")

    pre = {3: [f"s_mov_b64 s[20:21], s[{PE}:{PE+1}]"]}
    for c in range(1, 4):
        pre.setdefault(8 * c - 5, []).extend(dtab(2 * c))
        pre.setdefault(8 * c - 1, []).extend(dtab(2 * c + 1) + [f"v_add_u32 v{VF+c}, {c << 8}, v{VF}"])
    for n in range(8 * NB):
        dload(n, "0")
        if n & 3 == 3:
            e("    s_add_u32 m0, m0, 4096")
            f = pre.pop(n)
            if n & 7 == 7:
                e("    " + f.pop(0))
                e(f"    buffer_load_dwordx4 v{VF + n//8}, s[20:23], 0 offen lds")
                e("    s_add_u32 m0, m0, 1024")
            for x in f:
                e("    " + x)
    for n in sorted(pre):
        for x in pre[n]:
            e("    " + x)
    e("    s_mov_b32 s31, 0")
    e("    s_mov_b32 s32, 0")
    e("    s_mov_b32 s33, 0")
    e(f"    s_mov_b32 s36, {enc(mid):#x}")
    e("    s_mov_b32 s37, 0xc0000f")
    e("    s_mov_b32 s38, 0xffff8001")
    e(f"    s_add_u32 s24, s{PV}, s28")
    e(f"    s_addc_u32 s25, s{PV+1}, s27")
    n_last = 8 * NB - 1
    e(f"    v_mov_b32 v12, {(n_last + n_last // 8) << 4}")
    e("    s_barrier")
    e(f"    s_branch L_p{8*NB}")
    e("L_body:")
    pubd = 0
    for n in range(8 * U):
        issued = n + n // 8
        e(f"L_p{n}:")
        e("    s_getreg_b32 s40, hwreg(HW_REG_IB_STS)")
        e("    s_and_b32 s40, s40, s37")
        e("    s_cmp_ge_u32 s40, s36")
        e(f"    s_cbranch_scc1 L_p{n}")
        dload(n, "s32")
        if n & 3 == 3:
            e("    s_add_u32 m0, m0, 4096")
            e(f"    v_add_u32 v12, {(issued - pubd) << 4}, v12")
            pubd = issued
            if n & 7 == 7:
                e(f"    buffer_load_dwordx4 v{VF + n//8}, s[20:23], s33 offen lds")
                e("    s_add_u32 m0, m0, 1024")
                if n != 8 * U - 1:
                    e("    s_waitcnt lgkmcnt(0)")
                    e("    v_readfirstlane_b32 s36, v10")
            e("    v_add_u32 v11, s40, v12")
            e("    ds_write_b32 v7, v11")
            if n == 8 * U - 5:
                e("    ds_read_b128 v[36:39], v7 offset:16")
            elif n & 7 == 3:
                e("    ds_read_b32 v10, v7 offset:24          ; window")
    e(f"    v_add_u32 v12, {(9*U - pubd) << 4}, v12")
    e(f"    s_add_u32 s31, s31, {U}")
    e("    s_cmp_eq_u32 s31, 256")
    e("    s_cbranch_scc1 L_drain")
    e(f"    s_cmp_eq_u32 m0, {SLOT*S}")
    e("    s_cselect_b32 m0, 0, m0")
    e("    s_bitcmp1_b32 s31, 7")
    e("    s_cselect_b64 s[16:17], s[24:25], s[16:17]")
    e(f"    s_cselect_b64 s[20:21], s[{PF}:{PF+1}], s[20:21]")
    e("    s_bfe_u32 s30, s31, 0x40002")
    e("    s_cselect_b32 s38, s38, 0xffff8000")
    e("L_chkfree:")
    e("    s_waitcnt lgkmcnt(0)")
    e("    v_min_u32 v36, v36, v37")
    e("    v_readfirstlane_b32 s36, v38")
    e("    v_readfirstlane_b32 s29, v36")
    e("    v_readfirstlane_b32 s39, v39")
    e(f"    s_add_u32 s29, s29, {S - U}")
    e("    s_cmp_gt_u32 s31, s29")
    e("    s_cbranch_scc1 L_full")
    e("    s_add_u32 s30, s30, s39")
    e("    s_ff0_i32_b32 s29, s38")
    e("    s_bitcmp1_b32 s38, s30")
    e("    s_cselect_b32 s30, s29, s30")
    e("    s_bitset1_b32 s38, s30")
    if t0x:
        e("    s_bitcmp1_b32 s30, 0")
        e(f"    s_cselect_b32 s29, {t0x}, 0")
        e("    s_xor_b32 s30, s30, s29")
    e("    s_bfe_u32 s29, s30, 0x10000")
    e("    s_lshl_b32 s32, s29, 12")
    e("    s_bfe_u32 s29, s30, 0x20001")
    e("    s_lshl_b32 s29, s29, 17")
    e("    s_or_b32 s32, s32, s29")
    e("    s_bfe_u32 s29, s30, 0x10003")
    e("    s_lshl_b32 s29, s29, 14")
    e("    s_or_b32 s32, s32, s29")
    e("    s_lshr_b32 s33, s32, 7")
    e("    s_bfe_u32 s29, s31, 0x10006")
    e("    s_lshl_b32 s29, s29, 19")
    e("    s_or_b32 s32, s32, s29")
    e("    s_branch L_body")
    e("L_full:")
    e("    s_getreg_b32 s40, hwreg(HW_REG_IB_STS)")
    e("    s_and_b32 s40, s40, s37")
    e("    v_add_u32 v11, s40, v12")
    e("    ds_write_b32 v7, v11")
    e("    ds_read_b128 v[36:39], v7 offset:16")
    e("    s_branch L_chkfree")
    e("L_drain:")
    for n in (36, 27, 18, 9):
        e(f"    v_mov_b32 v11, {(2304 - n) << 4}")
        e(f"    s_waitcnt vmcnt({n})")
        e("    ds_write_b32 v7, v11")
    e("    s_waitcnt vmcnt(0)")
    e("    s_barrier")
    e("    s_endpgm")

    def decode(d):
        e(f"    s_lshr_b32 s29, s{d}, 18")
        e(f"    s_and_b32 s30, s{d}, 15")
        e("    s_or_b32 s29, s29, s30")
        e(f"    s_bfe_u32 s{d}, s{d}, 0xe0004")
        e(f"    s_sub_u32 s{d}, s{d}, s29")

    e("; ==================================================== balancer")
    e("L_balance:")
    e(f"    v_and_b32 v9, {NR-1}, v0")
    e(f"    v_mul_u32_u24 v9, {STR}, v9")
    e(f"    v_add_u32 v9, {WSB}, v9")
    e(f"    s_mul_i32 s58, s2, {STR}")
    e(f"    s_add_u32 s58, s58, {WSB + STR*NR}")
    e(f"    s_mov_b32 s31, {9*M}")
    e(f"    s_mov_b32 s33, {M}")
    e("    s_mov_b32 s52, 0")
    e("    s_mov_b32 s53, 0")
    e("    s_mov_b32 s55, 0")
    e("    s_mov_b32 s57, 0")
    e("    s_mov_b32 exec_lo, 0xffff")
    e("    s_sub_u32 s40, s40, 300")
    e("L_step:")
    e("    ds_read_b32 v8, v7")
    e("    s_waitcnt lgkmcnt(0)")
    e("    v_readfirstlane_b32 s28, v8")
    decode(28)
    e("    s_cmp_lt_u32 s28, s31")
    e("    s_cbranch_scc1 L_step")
    e("    s_memrealtime s[44:45]")
    e(f"    s_and_b32 s34, s33, {M-1}")
    e(f"    s_cmp_ge_u32 s33, {256 - M}")
    e("    s_cselect_b32 s34, -1, s34")
    e("    s_waitcnt lgkmcnt(0)")
    e("    s_sub_u32 s54, s44, s40")
    e(f"    s_cmp_lg_u32 s34, {cons}")
    e("    s_cbranch_scc1 L_nonotes")
    e(f"    s_cmp_lt_u32 s33, {2*M}")
    e("    s_cbranch_scc1 L_nonotes")
    e("    s_waitcnt vmcnt(0)")
    e("    v_subrev_u32 v12, s40, v12")
    e("    v_min_u32 v12, s55, v12")
    e("    s_nop 1")
    for d in (1, 2, 4):
        e(f"    v_add_u32_dpp v12, v12, v12 row_ror:{d} row_mask:0xf bank_mask:0xf")
        e("    s_nop 1")
    e("    v_readfirstlane_b32 s38, v12")
    e("    s_lshr_b32 s38, s38, 3")
    e("    s_sub_u32 s35, s59, s38")
    e("    s_sub_u32 s39, s38, s52")
    e("    s_mov_b32 s52, s38")
    e(f"    s_sub_u32 s56, s33, {M + cons}")
    e("    s_sub_u32 s38, s39, s53")
    e(f"    s_max_i32 s38, s38, {-pc}")
    e(f"    s_min_i32 s38, s38, {pc}")
    e(f"    s_add_u32 s38, s38, {1 << (psh - 1)}")
    e(f"    s_ashr_i32 s38, s38, {psh}")
    e("    s_add_u32 s38, s38, s53")
    e(f"    s_cmp_lt_u32 s33, {4*M}")
    e("    s_cselect_b32 s53, s39, s38")
    e("L_nonotes:")
    e(f"    s_cmp_lt_u32 s33, {3*M + cons}")
    e("    s_cbranch_scc1 L_noset")
    e("    s_sub_u32 s38, s33, s56")
    e("    s_mul_i32 s38, s38, s53")
    e("    s_lshr_b32 s38, s38, 3")
    e("    s_add_u32 s38, s38, s52")
    e("    s_sub_u32 s38, s54, s38")
    e(f"    s_mul_i32 s39, s57, {BT}")
    e("    s_min_i32 s36, s35, s38")
    e("    s_sub_u32 s36, s36, s39")
    e("    s_sub_u32 s39, s38, s39")
    e(f"    s_cmp_gt_i32 s36, {up}")
    e("    s_addc_u32 s57, s57, 0")
    e(f"    s_cmp_lt_i32 s39, {-dn}")
    e("    s_subb_u32 s57, s57, 0")
    e("    s_max_i32 s57, s57, 0")
    e("    s_min_i32 s57, s57, 15")
    e(f"    s_sub_u32 s39, s38, {knee}")
    e("    s_ashr_i32 s39, s39, 1")
    e(f"    s_add_u32 s39, s39, {knee}")
    e("    s_min_i32 s38, s38, s39")
    e(f"    s_add_u32 s38, s38, {(mid << sh) + (1 << (sh-1))}")
    e(f"    s_ashr_i32 s38, s38, {sh}")
    e(f"    s_max_i32 s38, s38, {wmin}")
    e(f"    s_min_i32 s38, s38, {wmax}")
    e("    s_lshl_b32 s39, s38, 18")
    e("    s_or_b32 s38, s38, s39")
    e("    s_and_b32 s38, s38, 0xc0000f")
    e("    v_mov_b32 v10, s38")
    e("    v_mov_b32 v11, s57")
    e("    ds_write_b64 v7, v[10:11] offset:24")
    e("L_noset:")
    e("    s_cmp_lg_u32 s34, 0")
    e("    s_cbranch_scc1 L_next")
    e("    s_mov_b32 s59, s55")
    e("    s_mov_b32 s55, s54")
    e(f"    s_cmp_ge_u32 s2, {NR}")
    e("    s_cbranch_scc1 L_nowrite")
    e("    v_mov_b32 v16, s44")
    e("    v_mov_b32 v17, s44")
    e("    v_lshl_add_u32 v18, v4, 3, s58")
    e(f"    global_store_dwordx2 v18, v[16:17], s[{PW}:{PW+1}] sc0 sc1")
    e(f"    s_add_u32 s58, s58, {STR*NR}")
    e("L_nowrite:")
    e(f"    s_cmp_eq_u32 s33, {M}")
    e("    s_cbranch_scc1 L_noread")
    e(f"    global_load_dword v12, v9, s[{PW}:{PW+1}] sc0 sc1")
    e("L_noread:")
    e(f"    v_add_u32 v9, {STR*NR}, v9")
    e("L_next:")
    e(f"    s_add_u32 s31, s31, {9*SUB}")
    e(f"    s_add_u32 s33, s33, {SUB}")
    e("    s_cmp_lt_u32 s33, 252")
    e("    s_cbranch_scc1 L_step")
    e("    s_endpgm")
    VA = 8
    VT = 14
    VE = 20
    VB = 24
    VACC = 40
    VP = 66
    VO = 72
    VX = 76
    VS = 92
    NV = 124
    e("; ==================================================== consumers")
    e("L_consumer:")
    if not qearly:
        qsetup()
        qload()
    e("    v_and_b32 v0, 63, v0")
    e(f"    s_add_u32 s29, s30, {QL}")
    e(f"    v_lshl_add_u32 v{VQ+8}, v13, 7, s29")
    e(f"    v_lshl_add_u32 v{VQ+8}, v5, 3, v{VQ+8}")
    e("    s_lshr_b32 s3, s3, 7")
    e("    s_lshl_b32 s29, s3, 7")
    e("    v_lshl_add_u32 v19, v13, 8, s29")
    e("    v_lshrrev_b32 v13, 3, v4")
    e("    v_lshl_add_u32 v19, v13, 6, v19")
    e("    v_and_b32 v13, 1, v5")
    e("    v_lshl_add_u32 v19, v13, 5, v19")
    e("    v_lshrrev_b32 v6, 1, v5")
    e("    v_lshl_add_u32 v19, v6, 4, v19")
    e("    v_cmp_lt_u32 vcc, 7, v4")
    e("    v_bfe_u32 v6, v0, 2, 2")
    e("    v_lshl_add_u32 v12, v5, 3, v6")
    e("    v_lshl_add_u32 v6, v13, 2, v6")
    e("    s_lshl_b32 s29, s3, 2")
    e("    v_xor_b32 v6, s29, v6")
    e("    v_lshlrev_b32 v6, 5, v6")
    e("    v_lshl_add_u32 v6, v12, 8, v6")
    e("    v_and_b32 v13, 3, v0")
    e(f"    v_lshl_add_u32 v{VA}, v13, 3, v6")
    for j in range(1, 4):
        e(f"    v_xor_b32 v{VA+j}, {32*j}, v{VA}")
    e("    v_lshrrev_b32 v13, 2, v4")
    e("    v_and_b32 v13, 2, v13")
    e("    v_xor_b32 v13, v13, v5")
    e("    v_lshl_add_u32 v13, v4, 2, v13")
    e(f"    v_lshlrev_b32 v{VA+4}, 4, v13")
    e(f"    v_add_u32 v{VA+4}, 8192, v{VA+4}")
    e("    v_add_u32 v3, s29, v7")
    e("    v_xor_b32 v2, 4, v3")
    e(f"    s_add_u32 s16, s{PO}, s27")
    e(f"    s_addc_u32 s17, s{PO+1}, 0")
    e("    s_add_u32 s20, s16, 2048")
    e("    s_addc_u32 s21, s17, 0")
    e("    s_movk_i32 s18, 2048")
    e("    s_movk_i32 s22, 2048")
    e("    s_mov_b32 s31, 0")
    e("    s_mov_b32 s32, 9")
    e("    s_mov_b32 s33, 0")
    e("    s_mov_b32 s34, 0")
    e("    s_branch L_headk")
    e("L_fold:")
    e("    s_cmp_eq_u32 s28, 60")
    e("    s_nop 3")
    for i in range(16):
        t = VX + 2 * (i & 3)
        e(f"    v_cvt_f64_f32 v[{t}:{t+1}], v{VACC+i}")
        e(f"    v_mov_b32 v{VACC+i}, 0")
        e(f"    v_add_f64 v[{VS+2*i}:{VS+2*i+1}], v[{VS+2*i}:{VS+2*i+1}], v[{t}:{t+1}]")
    e("    s_cbranch_scc0 L_folded")
    for i in range(16):
        e(f"    v_cvt_f32_f64 v{VACC+i}, v[{VS+2*i}:{VS+2*i+1}]")
    e("L_folded:")
    if probe:
        e(f"    s_cmp_lg_u32 s31, {probe}")
        e("    s_cbranch_scc1 L_nopr")
        e("    s_memrealtime s[48:49]")
        e("    s_waitcnt lgkmcnt(0)")
        e("L_nopr:")
    e("    s_bitcmp0_b32 s31, 7")
    e("    s_cbranch_scc1 L_k")
    e(f"    s_cmp_lg_u32 s31, {late}")
    e("    s_cbranch_scc1 L_v")
    e(f"    buffer_store_dwordx4 v[{VO}:{VO+3}], v19, s[16:19], 0 offen")
    e("    s_branch L_v")

    def seg(tag, isK):
        for i in range(8):
            e(f"    v_mov_b64 v[{VACC+2*i}:{VACC+2*i+1}], 0")
        for i in range(16):
            e(f"    v_mov_b64 v[{VS+2*i}:{VS+2*i+1}], 0")
        e(f"L_{tag}:")
        for j in range(5):
            e(f"    v_add_u32 v{VT+j}, s34, v{VA+j}")
        e("    s_add_u32 s31, s31, 1")
        e("    v_mov_b32 v13, s31")
        e("    s_cmp_ge_u32 s33, s32")
        e(f"    s_cbranch_scc1 L_{tag}_go")
        if not isK:
            e("    s_cmp_lg_u32 s31, 256")
            e(f"    s_cbranch_scc1 L_{tag}_poll")
            e("    s_barrier")
            e(f"    s_branch L_{tag}_go")
        e(f"L_{tag}_poll:")
        e("    ds_read_b32 v6, v7")
        e("    s_waitcnt lgkmcnt(0)")
        e("    v_readfirstlane_b32 s33, v6")
        decode(33)
        e("    s_cmp_lt_u32 s33, s32")
        e(f"    s_cbranch_scc1 L_{tag}_poll")
        e(f"L_{tag}_go:")
        e(f"    ds_read_b128 v[{VE}:{VE+3}], v{VT+4}")
        for j in range(4):
            e(f"    ds_read_b64_tr_b16 v[{VB+4*j}:{VB+4*j+1}], v{VT+j}")
            e(f"    ds_read_b64_tr_b16 v[{VB+4*j+2}:{VB+4*j+3}], v{VT+j} offset:1024")
        e("    ds_write_b32 v3, v13 offset:16")
        e("    s_add_u32 s32, s32, 9")
        e(f"    s_add_u32 s34, s34, {SLOT}")
        e(f"    s_cmp_eq_u32 s34, {SLOT*S}")
        e("    s_cselect_b32 s34, 0, s34")
        e("    s_and_b32 s28, s31, 3")
        for j in range(4):
            e(f"    s_waitcnt lgkmcnt({7-2*j})")
            a = VACC + 4 * j
            t = VB + 4 * j
            if isK:
                e(f"    v_mfma_f32_16x16x32_bf16 v[{a}:{a+3}], v[{t}:{t+3}], v[{VE}:{VE+3}], v[{a}:{a+3}]")
            else:
                e(f"    v_mfma_f32_16x16x32_bf16 v[{a}:{a+3}], v[{VE}:{VE+3}], v[{t}:{t+3}], v[{a}:{a+3}]")
        e(f"    s_cbranch_scc1 L_{tag}")
        e("    s_and_b32 s28, s31, 63")
        e("    s_cbranch_scc1 L_fold")

    e("L_headk:")
    seg("k", True)
    T = VX
    e("    s_waitcnt vmcnt(0)")
    for j in range(4):
        e(f"    ds_read_b64 v[{VQ+2*j}:{VQ+2*j+1}], v{VQ+8} offset:{32*j}")
    e(f"    v_add_u32 v{VQ+8}, 1024, v{VQ+8}")
    for j in range(4):
        e(f"    v_cvt_pk_bf16_f32 v{T+2*j}, v{VACC+4*j}, v{VACC+4*j+1}")
        e(f"    v_cvt_pk_bf16_f32 v{T+2*j+1}, v{VACC+4*j+2}, v{VACC+4*j+3}")
    e("    s_lshl_b32 s28, s3, 10")
    e(f"    s_add_u32 s28, s28, {SCX - 8192}")
    e("    s_waitcnt lgkmcnt(0)")
    e(f"    v_mfma_f32_16x16x32_bf16 v[{T+8}:{T+11}], v[{T}:{T+3}], v[{VQ}:{VQ+3}], 0")
    e(f"    v_mfma_f32_16x16x32_bf16 v[{T+8}:{T+11}], v[{T+4}:{T+7}], v[{VQ+4}:{VQ+7}], v[{T+8}:{T+11}]")
    e(f"    v_add_u32 v14, s28, v{VA+4}")
    e("    v_xor_b32 v15, 16, v0")
    e("    v_xor_b32 v16, 32, v0")
    e("    v_lshlrev_b32 v15, 2, v15")
    e("    v_lshlrev_b32 v16, 2, v16")
    e("    s_xor_b32 s29, s3, 1")
    e("    s_lshl_b32 s29, s29, 10")
    e(f"    s_add_u32 s29, s29, {SCX - 8192}")
    e(f"    v_add_u32 v17, s29, v{VA+4}")
    e(f"    ds_write_b128 v14, v[{T+8}:{T+11}]")
    e("    ds_write_b32 v3, v13 offset:32")
    e("L_scpoll:")
    e("    ds_read_b32 v6, v2 offset:32")
    e("    s_waitcnt lgkmcnt(0)")
    e("    v_readfirstlane_b32 s28, v6")
    e("    s_cmp_lt_u32 s28, s31")
    e("    s_cbranch_scc1 L_scpoll")
    e(f"    ds_read_b128 v[{T}:{T+3}], v17")
    e("    s_waitcnt lgkmcnt(0)")
    for i in range(4):
        e(f"    v_add_f32 v{T+i}, v{T+i}, v{T+8+i}")

    def rnd():
        e(f"    v_cvt_pk_bf16_f32 v{T+4}, v{T}, v{T+1}")
        e(f"    v_cvt_pk_bf16_f32 v{T+5}, v{T+2}, v{T+3}")
        e(f"    v_lshlrev_b32 v{T}, 16, v{T+4}")
        e(f"    v_and_b32 v{T+1}, 0xffff0000, v{T+4}")
        e(f"    v_lshlrev_b32 v{T+2}, 16, v{T+5}")
        e(f"    v_and_b32 v{T+3}, 0xffff0000, v{T+5}")
    rnd()
    for i in range(4):
        e(f"    v_mul_f32 v{T+i}, 0x3db504f3, v{T+i}         ; 128^-0.5")
    rnd()
    e(f"    v_max_f32 v{T+4}, v{T}, v{T+1}")
    e(f"    v_max3_f32 v{T+4}, v{T+2}, v{T+3}, v{T+4}")
    e(f"    ds_bpermute_b32 v{T+5}, v15, v{T+4}")
    e("    s_waitcnt lgkmcnt(0)")
    e(f"    v_max_f32 v{T+4}, v{T+4}, v{T+5}")
    e(f"    ds_bpermute_b32 v{T+5}, v16, v{T+4}")
    e("    s_waitcnt lgkmcnt(0)")
    e(f"    v_max_f32 v{T+4}, v{T+4}, v{T+5}")
    for i in range(4):
        e(f"    v_sub_f32 v{T+i}, v{T+i}, v{T+4}")
    for i in range(4):
        e(f"    v_mul_f32 v{T+i}, 0x3fb8aa3b, v{T+i}         ; log2(e)")
    for i in range(4):
        e(f"    v_exp_f32 v{T+i}, v{T+i}")
    e("    s_nop 0")
    e(f"    v_add_f32 v{T+4}, v{T}, v{T+1}")
    e(f"    v_add_f32 v{T+5}, v{T+2}, v{T+3}")
    e(f"    v_add_f32 v{T+4}, v{T+4}, v{T+5}")
    e(f"    ds_bpermute_b32 v{T+5}, v15, v{T+4}")
    e("    s_waitcnt lgkmcnt(0)")
    e(f"    v_add_f32 v{T+4}, v{T+4}, v{T+5}")
    e(f"    ds_bpermute_b32 v{T+5}, v16, v{T+4}")
    e("    s_waitcnt lgkmcnt(0)")
    e(f"    v_add_f32 v{T+4}, v{T+4}, v{T+5}")
    e(f"    v_rcp_f32 v{T+4}, v{T+4}")
    e(f"    v_mov_b64 v[{VP}:{VP+1}], v[{VP+2}:{VP+3}]")
    for i in range(4):
        e(f"    v_mul_f32 v{T+i}, v{T+i}, v{T+4}")
    e(f"    v_cvt_pk_bf16_f32 v{VP+2}, v{T}, v{T+1}")
    e(f"    v_cvt_pk_bf16_f32 v{VP+3}, v{T+2}, v{T+3}")
    e("    s_cmp_eq_u32 s31, 64")
    e("    s_cbranch_scc1 L_headk")
    e("L_headv:")
    seg("v", False)
    e("    s_cmp_eq_u32 s31, 256")
    for j in range(4):
        e(f"    v_cvt_pk_bf16_f32 v{VB+2*j}, v{VACC+4*j}, v{VACC+4*j+1}")
        e(f"    v_cvt_pk_bf16_f32 v{VB+2*j+1}, v{VACC+4*j+2}, v{VACC+4*j+3}")
    for j in range(4):
        e(f"    v_mfma_f32_16x16x16_bf16 v[{T+4*j}:{T+4*j+3}], v[{VB+2*j}:{VB+2*j+1}], v[{VP}:{VP+1}], 0")
    e("    s_nop 6")
    for i in range(8):
        e(f"    v_cndmask_b32 v{T+i}, v{T+i}, v{T+8+i}, vcc")
    for j in range(2):
        e(f"    v_cvt_pk_bf16_f32 v{VO+2*j}, v{T+4*j}, v{T+4*j+1}")
    for j in range(2):
        e(f"    v_cvt_pk_bf16_f32 v{VO+2*j+1}, v{T+4*j+2}, v{T+4*j+3}")
    e(f"    v_permlane16_swap_b32 v{VO}, v{VO+2}")
    e(f"    v_mov_b64 v[{VP}:{VP+1}], v[{VP+2}:{VP+3}]")
    e(f"    v_permlane16_swap_b32 v{VO+1}, v{VO+3}")
    e("    s_cbranch_scc0 L_headv")
    e(f"    buffer_store_dwordx4 v[{VO}:{VO+3}], v19, s[20:23], 0 offen")
    if spin:
        e("    s_waitcnt vmcnt(0)")
        e("    s_memrealtime s[62:63]")
        e("    s_waitcnt lgkmcnt(0)")
        e("    s_sub_u32 s46, s62, s60" if not probe else "    s_sub_u32 s46, s48, s60")
        e(f"    s_mul_i32 s46, s46, {spin}")
        if probe:
            e("    s_add_u32 s46, s46, 10000")
        e("    s_min_u32 s46, s46, 200000")
        e("L_spin:")
        e("    s_memrealtime s[62:63]")
        e("    s_waitcnt lgkmcnt(0)")
        e("    s_sub_u32 s47, s62, s60")
        e("    s_cmp_lt_u32 s47, s46")
        e("    s_cbranch_scc1 L_spin")
    if stamp:
        if stamp == 2:
            e("    s_waitcnt vmcnt(0)")
        e("    s_memrealtime s[62:63]")
        e("    s_lshl_b32 s47, s2, 1")
        e("    s_add_u32 s46, s3, s47")
        e("    s_lshl_b32 s46, s46, 4")
        e("    s_waitcnt vmcnt(0) lgkmcnt(0)")
        e("    s_getreg_b32 s61, hwreg(HW_REG_XCC_ID)")
        e("    v_mov_b32 v12, s60")
        e("    v_mov_b32 v13, s61")
        e("    v_mov_b32 v14, s62" if not probe else "    v_mov_b32 v14, s48")
        e("    v_mov_b32 v15, 0")
        e("    v_mov_b32 v16, s46")
        e(f"    global_store_dwordx4 v16, v[12:15], s[{PW}:{PW+1}]")
    e("L_done:")
    e("    s_endpgm")
    e('.section .rodata,"a"')
    e(".p2align 6")
    e(f".amdhsa_kernel {NAME}_kernel")
    e(f"  .amdhsa_next_free_vgpr {NV}")
    e("  .amdhsa_next_free_sgpr 80")
    e(f"  .amdhsa_accum_offset {(NV+3)//4*4}")
    e("  .amdhsa_group_segment_fixed_size 0")
    e("  .amdhsa_kernarg_size 64")
    e("  .amdhsa_user_sgpr_count 2")
    e("  .amdhsa_user_sgpr_kernarg_segment_ptr 1")
    e("  .amdhsa_system_sgpr_workgroup_id_x 1")
    e("  .amdhsa_float_denorm_mode_32 3")
    e(".end_amdhsa_kernel")
    return "\n".join(L) + "\n"


if __name__ == "__main__":
    import sys
    kw = {}
    out = "/dev/stdout"
    for a in sys.argv[1:]:
        k, v = a.split("=")
        if k == "o":
            out = v
            continue
        try:
            v = int(v)
        except ValueError:
            pass
        kw[k] = v
    open(out, "w").write(gen(**kw))
```

```python
NAME = "standalone__low_rank_proj_linformer__sampling"

HEADER = """; Kernarg layout for this problem (64 bytes, ptrs only, base s[0:1]):
"""

DOC = """;
"""


def enc(w):
    return (w & 15) | ((w >> 4) << 22)


def gen(mid=24, wmin=21, wmax=38, sh=3, knee=32, up=120, dn=65, BT=107, psh=3, pc=12, cons=2, t0x=14,
        w="25.22.23.20.21.24.26.27", qearly=1, late=248, stamp=0, spin=0, rep=0, NB=2, probe=0, tlb=0, tn=1, est=2, P0=214, wa=0, wb_=0, st=1, rd0=0, inv0=40, g0=0, T0=0):
    L = []
    e = L.append
    S, U, M, NR, SUB = 16, 4, 8, 8, 2
    SLOT = 9216
    FLG = S * SLOT
    SCX = FLG + 256
    QL = SCX + 2048
    LDS = QL + 4096
    STR = 4352
    WSB = 1 << 20
    PQ, PK, PV, PE, PF, PO, PW = 64, 66, 68, 70, 72, 74, 78
    e(HEADER.rstrip())
    e(f"; @launch grid=(256,1,1) block=(256,1,1) lds={LDS}")
    e(DOC.rstrip())
    e('.amdgcn_target "amdgcn-amd-amdhsa--gfx950"')
    e(".text")
    e(f".globl {NAME}_kernel")
    e(".p2align 12                                ; keeps the start-up code inside one 4 KiB page")
    e(".p2align 8")
    e(f".type {NAME}_kernel,@function")
    e(f"{NAME}_kernel:")
    if spin or stamp:
        e("    s_memrealtime s[60:61]")
    e("    s_load_dwordx16 s[64:79], s[0:1], 0")
    e("    v_readfirstlane_b32 s3, v0")
    e("    s_cmp_ge_u32 s2, 256")
    e("    s_cbranch_scc1 L_done")
    e("    v_and_b32 v4, 15, v0")
    e("    v_bfe_u32 v5, v0, 4, 2")
    e(f"    v_mov_b32 v7, {FLG}")
    wb = [int(t) - 20 for t in str(w).split(".")]
    b = 0
    while b < 8:
        n = 1
        while b + n < 8 and wb[b + n] == wb[b] + n:
            n += 1
        t = 28 if b == 0 else 29
        if wb[b] == b:
            e(f"    s_and_b32 s{t}, s2, {((1 << n) - 1) << b}")
        else:
            e(f"    s_bfe_u32 s{t}, s2, {(n << 16) | b:#x}")
            if wb[b]:
                e(f"    s_lshl_b32 s{t}, s{t}, {wb[b]}")
        if b:
            e("    s_or_b32 s28, s28, s29" + ("                 ; s28 = pair of heads (bit permutation of the workgroup id)" if b + n == 8 else ""))
        b += n
    e("    s_mov_b32 s19, 0x00020000")
    e("    s_mov_b32 s23, 0x00020000")
    e("    s_cmp_eq_u32 s3, 0")
    e("    s_cbranch_scc1 L_loader")

    VQ = 56

    def qsetup():
        e("    v_bfe_u32 v13, v0, 3, 3")
        e("    s_and_b32 s30, s3, 128                 ; consumer * 128")
        e(f"    v_lshl_add_u32 v{VQ}, v13, 8, s30")
        e("    v_and_b32 v13, 7, v0")
        e(f"    v_lshl_add_u32 v{VQ}, v13, 4, v{VQ}")
        e("    s_lshl_b32 s30, s30, 4")
        e(f"    s_add_u32 m0, s30, {QL}")
        e("    s_lshl_b32 s27, s28, 12")
        e("    s_movk_i32 s18, 4096")

    def qload():
        e(f"    s_add_u32 s16, s{PQ}, s27")
        e(f"    s_addc_u32 s17, s{PQ+1}, 0")
        e(f"    buffer_load_dwordx4 v{VQ}, s[16:19], 0 offen nt lds")
        e("    s_add_u32 m0, m0, 1024")
        e("    s_movk_i32 s29, 2048")
        e(f"    buffer_load_dwordx4 v{VQ}, s[16:19], s29 offen nt lds")

    e("    s_memrealtime s[40:41]")
    e("    v_mov_b32 v8, 0")
    e("    v_mov_b32 v9, 0")
    if wa:
        e("    s_getreg_b32 s29, hwreg(HW_REG_XCC_ID, 2, 1)")
        e("    s_cmp_eq_u32 s29, 0")
        e(f"    s_mov_b32 s29, {enc(wb_):#x}")
        e(f"    s_cselect_b32 s29, {enc(wa):#x}, s29")
        e("    v_mov_b32 v10, s29")
    else:
        e(f"    v_mov_b32 v10, {enc(mid):#x}")
    e("    v_mov_b32 v11, 0")
    e("    ds_write_b32 v7, v8")
    e("    ds_write_b128 v7, v[8:11] offset:16")
    e("    ds_write_b64 v7, v[8:9] offset:32")
    if qearly:
        qsetup()
    e("    v_and_b32 v14, 31, v0")
    e("    s_bfe_u32 s29, s2, 0x40003")
    e("    s_lshl_b32 s29, s29, 7")
    e("    v_lshl_add_u32 v14, v14, 11, s29")
    e("    s_cmp_lg_u32 s3, 192")
    e("    s_waitcnt lgkmcnt(0)")
    e("    s_cbranch_scc1 L_meetc")
    e("    s_bitcmp1_b32 s2, 7")
    e(f"    s_cselect_b64 s[20:21], s[{PF}:{PF+1}], s[{PE}:{PE+1}]")
    e("    s_mov_b32 exec_hi, 0")
    e("    global_load_dword v15, v14, s[20:21]")
    if st:
        e(f"    s_cmp_ge_u32 s2, {NR}")
        e("    s_cbranch_scc1 L_nostart")
        e(f"    s_mul_i32 s29, s2, {STR}")
        e(f"    s_add_u32 s29, s29, {WSB - STR*NR}")
        e("    v_and_b32 v18, 31, v0")
        e("    v_mov_b32 v16, s40")
        e("    v_lshl_add_u32 v18, v18, 2, s29")
        e(f"    global_store_dword v18, v16, s[{PW}:{PW+1}] sc0 sc1")
        e("L_nostart:")
    e("    s_barrier")
    e("    s_branch L_balance")
    e("L_meetc:")
    if qearly:
        qload()
    e("    s_barrier")
    e("    s_branch L_consumer")
    VD = 16
    VF = 32
    e("; ==================================================== loader")
    e("L_loader:")
    e("    v_lshlrev_b32 v6, 1, v5")
    e("    v_xor_b32 v6, v6, v4")
    e("    v_lshlrev_b32 v6, 4, v6")
    e("    v_lshl_add_u32 v6, v5, 8, v6")
    e("    s_bfe_u32 s24, s2, 0x10007")
    e("    s_lshl_b32 s27, s24, 11")
    e("    s_add_u32 s30, s27, 2048")
    e("    s_sub_u32 s26, 2048, s27")
    e(f"    v_add_u32 v{VD}, s30, v6")
    e("    v_xor_b32 v6, 0x80, v6")
    e(f"    v_add_u32 v{VD+1}, s26, v6")
    e(f"    v_add_u32 v{VD+2}, 8192, v{VD}")
    e(f"    v_add_u32 v{VD+3}, 8192, v{VD+1}")
    e("    s_lshl_b32 s28, s28, 20")
    e("    s_sub_u32 s28, s28, 2048")
    e("    s_subb_u32 s27, 0, 0")
    e("    s_mov_b32 s18, 0x100800")
    e("    s_mov_b32 m0, 0")
    e("    v_lshrrev_b32 v4, 2, v0")
    e("    v_and_b32 v5, 2, v5")
    e("    v_xor_b32 v5, v5, v0")
    e("    v_xor_b32 v5, s24, v5")
    e(f"    v_lshlrev_b32 v{VF}, 12, v4")
    e("    v_and_b32 v6, 1, v5")
    e(f"    v_lshl_add_u32 v{VF}, v6, 4, v{VF}")
    e("    v_bfe_u32 v6, v5, 1, 1")
    e(f"    v_lshl_add_u32 v{VF}, v6, 6, v{VF}")
    e("    s_mov_b32 s22, 65536")
    e("    s_waitcnt lgkmcnt(0)")
    e(f"    s_add_u32 s16, s{PK}, s28")
    e(f"    s_addc_u32 s17, s{PK+1}, s27")

    def dtab(n):
        o = (n >> 1) << 15
        return [f"v_add_u32 v{VD+2*n}, {o}, v{VD+2*(n&1)}", f"v_add_u32 v{VD+2*n+1}, {o}, v{VD+2*(n&1)+1}"]

    def dload(n, so):
        o = (n & 3) * 1024
        off = f" offset:{o}" if o else ""
        v = VD + 2 * (n >> 2) + ((n >> 1) & 1)
        e(f"    buffer_load_dwordx4 v{v}, s[16:19], {so} offen{off} nt lds")

    pre = {3: [f"s_mov_b64 s[20:21], s[{PE}:{PE+1}]"]}
    for c in range(1, 4):
        pre.setdefault(8 * c - 5, []).extend(dtab(2 * c))
        pre.setdefault(8 * c - 1, []).extend(dtab(2 * c + 1) + [f"v_add_u32 v{VF+c}, {c << 8}, v{VF}"])
    for n in range(8 * NB):
        dload(n, "0")
        if n & 3 == 3:
            e("    s_add_u32 m0, m0, 4096")
            f = pre.pop(n)
            if n & 7 == 7:
                e("    " + f.pop(0))
                e(f"    buffer_load_dwordx4 v{VF + n//8}, s[20:23], 0 offen lds")
                e("    s_add_u32 m0, m0, 1024")
            for x in f:
                e("    " + x)
    for n in sorted(pre):
        for x in pre[n]:
            e("    " + x)
    e("    s_mov_b32 s31, 0")
    e("    s_mov_b32 s32, 0")
    e("    s_mov_b32 s33, 0")
    e(f"    s_mov_b32 s36, {enc(mid):#x}")
    e("    s_mov_b32 s37, 0xc0000f")
    e("    s_mov_b32 s38, 0xffff8001")
    e(f"    s_add_u32 s24, s{PV}, s28")
    e(f"    s_addc_u32 s25, s{PV+1}, s27")
    n_last = 8 * NB - 1
    e(f"    v_mov_b32 v12, {(n_last + n_last // 8) << 4}")
    e("    s_barrier")
    e(f"    s_branch L_p{8*NB}")
    e("L_body:")
    pubd = 0
    for n in range(8 * U):
        issued = n + n // 8
        e(f"L_p{n}:")
        e("    s_getreg_b32 s40, hwreg(HW_REG_IB_STS)")
        e("    s_and_b32 s40, s40, s37")
        e("    s_cmp_ge_u32 s40, s36")
        e(f"    s_cbranch_scc1 L_p{n}")
        dload(n, "s32")
        if n & 3 == 3:
            e("    s_add_u32 m0, m0, 4096")
            e(f"    v_add_u32 v12, {(issued - pubd) << 4}, v12")
            pubd = issued
            if n & 7 == 7:
                e(f"    buffer_load_dwordx4 v{VF + n//8}, s[20:23], s33 offen lds")
                e("    s_add_u32 m0, m0, 1024")
                if n != 8 * U - 1:
                    e("    s_waitcnt lgkmcnt(0)")
                    e("    v_readfirstlane_b32 s36, v10")
            e("    v_add_u32 v11, s40, v12")
            e("    ds_write_b32 v7, v11")
            if n == 8 * U - 5:
                e("    ds_read_b128 v[36:39], v7 offset:16")
            elif n & 7 == 3:
                e("    ds_read_b32 v10, v7 offset:24          ; window")
    e(f"    v_add_u32 v12, {(9*U - pubd) << 4}, v12")
    e(f"    s_add_u32 s31, s31, {U}")
    e("    s_cmp_eq_u32 s31, 256")
    e("    s_cbranch_scc1 L_drain")
    e(f"    s_cmp_eq_u32 m0, {SLOT*S}")
    e("    s_cselect_b32 m0, 0, m0")
    e("    s_bitcmp1_b32 s31, 7")
    e("    s_cselect_b64 s[16:17], s[24:25], s[16:17]")
    e(f"    s_cselect_b64 s[20:21], s[{PF}:{PF+1}], s[20:21]")
    e("    s_bfe_u32 s30, s31, 0x40002")
    e("    s_cselect_b32 s38, s38, 0xffff8000")
    e("L_chkfree:")
    e("    s_waitcnt lgkmcnt(0)")
    e("    v_min_u32 v36, v36, v37")
    e("    v_readfirstlane_b32 s36, v38")
    e("    v_readfirstlane_b32 s29, v36")
    e("    v_readfirstlane_b32 s39, v39")
    e(f"    s_add_u32 s29, s29, {S - U}")
    e("    s_cmp_gt_u32 s31, s29")
    e("    s_cbranch_scc1 L_full")
    e("    s_add_u32 s30, s30, s39")
    e("    s_ff0_i32_b32 s29, s38")
    e("    s_bitcmp1_b32 s38, s30")
    e("    s_cselect_b32 s30, s29, s30")
    e("    s_bitset1_b32 s38, s30")
    if t0x:
        e("    s_bitcmp1_b32 s30, 0")
        e(f"    s_cselect_b32 s29, {t0x}, 0")
        e("    s_xor_b32 s30, s30, s29")
    e("    s_bfe_u32 s29, s30, 0x10000")
    e("    s_lshl_b32 s32, s29, 12")
    e("    s_bfe_u32 s29, s30, 0x20001")
    e("    s_lshl_b32 s29, s29, 17")
    e("    s_or_b32 s32, s32, s29")
    e("    s_bfe_u32 s29, s30, 0x10003")
    e("    s_lshl_b32 s29, s29, 14")
    e("    s_or_b32 s32, s32, s29")
    e("    s_lshr_b32 s33, s32, 7")
    e("    s_bfe_u32 s29, s31, 0x10006")
    e("    s_lshl_b32 s29, s29, 19")
    e("    s_or_b32 s32, s32, s29")
    e("    s_branch L_body")
    e("L_full:")
    e("    s_getreg_b32 s40, hwreg(HW_REG_IB_STS)")
    e("    s_and_b32 s40, s40, s37")
    e("    v_add_u32 v11, s40, v12")
    e("    ds_write_b32 v7, v11")
    e("    ds_read_b128 v[36:39], v7 offset:16")
    e("    s_branch L_chkfree")
    e("L_drain:")
    for n in (36, 27, 18, 9):
        e(f"    v_mov_b32 v11, {(2304 - n) << 4}")
        e(f"    s_waitcnt vmcnt({n})")
        e("    ds_write_b32 v7, v11")
    e("    s_waitcnt vmcnt(0)")
    e("    s_barrier")
    e("    s_endpgm")

    def decode(d):
        e(f"    s_lshr_b32 s29, s{d}, 18")
        e(f"    s_and_b32 s30, s{d}, 15")
        e("    s_or_b32 s29, s29, s30")
        e(f"    s_bfe_u32 s{d}, s{d}, 0xe0004")
        e(f"    s_sub_u32 s{d}, s{d}, s29")

    def setwin():
        e(f"    s_sub_u32 s39, s38, {knee}")
        e("    s_ashr_i32 s39, s39, 1")
        e(f"    s_add_u32 s39, s39, {knee}")
        e("    s_min_i32 s38, s38, s39")
        e(f"    s_add_u32 s38, s38, {(mid << sh) + (1 << (sh-1))}")
        e(f"    s_ashr_i32 s38, s38, {sh}")
        e(f"    s_max_i32 s38, s38, {wmin}")
        e(f"    s_min_i32 s38, s38, {wmax}")
        e("    s_lshl_b32 s39, s38, 18")
        e("    s_or_b32 s38, s38, s39")
        e("    s_and_b32 s38, s38, 0xc0000f")
        e("    v_mov_b32 v10, s38")
        e("    v_mov_b32 v11, s57")
        e("    ds_write_b64 v7, v[10:11] offset:24")

    def mean8():
        e("    s_nop 1")
        for d in (1, 2, 4):
            e(f"    v_add_u32_dpp v12, v12, v12 row_ror:{d} row_mask:0xf bank_mask:0xf")
            e("    s_nop 1")
        e("    v_readfirstlane_b32 s38, v12")
        e("    s_lshr_b32 s38, s38, 3")

    e("; ==================================================== balancer")
    e("L_balance:")
    e(f"    v_and_b32 v9, {NR-1}, v0")
    e(f"    v_mul_u32_u24 v9, {STR}, v9")
    e(f"    v_add_u32 v9, {WSB}, v9")
    e(f"    s_mul_i32 s58, s2, {STR}")
    e(f"    s_add_u32 s58, s58, {WSB + (0 if est else STR*NR)}")
    e(f"    s_mov_b32 s31, {9*(est or M)}")
    e(f"    s_mov_b32 s33, {est or M}")
    e("    s_mov_b32 s52, 0")
    e(f"    s_mov_b32 s53, {P0 if est else 0}")
    e("    s_mov_b32 s55, 0")
    e("    s_mov_b32 s57, 0")
    if tlb:
        e("    s_lshl_b32 s29, s28, 20")
        e(f"    v_and_b32 v20, {tn-1}, v0")
        e(f"    v_lshl_add_u32 v20, v20, {20 - (tn.bit_length() - 1)}, s29")
    e("    s_mov_b32 exec_lo, 0xffff")
    e("    s_sub_u32 s40, s40, 300")
    if st:
        if rd0:
            e("L_first:")
            e("    ds_read_b32 v8, v7")
            e("    s_waitcnt lgkmcnt(0)")
            e("    v_readfirstlane_b32 s28, v8")
            decode(28)
            e(f"    s_cmp_lt_u32 s28, {rd0}")
            e("    s_cbranch_scc1 L_first")
        e(f"    v_subrev_u32 v13, {STR*NR}, v9")
        e("    s_memrealtime s[44:45]")
        e(f"    global_load_dword v12, v13, s[{PW}:{PW+1}] sc0 sc1")
        e("    s_waitcnt vmcnt(0) lgkmcnt(0)")
        e("    s_sub_u32 s54, s44, s40")
        e(f"    s_sub_u32 s54, s54, {inv0}")
        e("    v_subrev_u32 v12, s40, v12")
        e("    v_min_u32 v12, s54, v12")
        mean8()
        if T0:
            e(f"    s_add_u32 s52, s38, {T0}")
            e("    s_mov_b32 s56, 0")
            e("    s_mov_b32 s35, 0")
        else:
            e("    s_sub_u32 s38, 300, s38")
            if g0:
                e(f"    s_ashr_i32 s38, s38, {g0}")
            setwin()
    e("L_step:")
    e("    ds_read_b32 v8, v7")
    e("    s_waitcnt lgkmcnt(0)")
    e("    v_readfirstlane_b32 s28, v8")
    decode(28)
    e("    s_cmp_lt_u32 s28, s31")
    e("    s_cbranch_scc1 L_step")
    e("    s_memrealtime s[44:45]")
    e(f"    s_and_b32 s34, s33, {M-1}")
    e(f"    s_cmp_ge_u32 s33, {256 - M}")
    e("    s_cselect_b32 s34, -1, s34")
    e("    s_waitcnt lgkmcnt(0)")
    e("    s_sub_u32 s54, s44, s40")
    e(f"    s_cmp_lg_u32 s34, {cons}")
    e("    s_cbranch_scc1 L_nonotes")
    e(f"    s_cmp_lt_u32 s33, {M if est else 2*M}")
    e("    s_cbranch_scc1 L_nonotes")
    e("    s_waitcnt vmcnt(0)")
    e("    v_subrev_u32 v12, s40, v12")
    e("    v_min_u32 v12, s55, v12")
    mean8()
    e("    s_sub_u32 s35, s59, s38")
    e("    s_sub_u32 s39, s38, s52")
    e("    s_mov_b32 s52, s38")
    e(f"    s_sub_u32 s56, s33, {M + cons}")
    if est:
        e(f"    s_max_u32 s56, s56, {est}")
    e("    s_sub_u32 s38, s39, s53")
    e(f"    s_max_i32 s38, s38, {-pc}")
    e(f"    s_min_i32 s38, s38, {pc}")
    e(f"    s_add_u32 s38, s38, {1 << (psh - 1)}")
    e(f"    s_ashr_i32 s38, s38, {psh}")
    e("    s_add_u32 s38, s38, s53")
    e(f"    s_cmp_lt_u32 s33, {3*M if est else 4*M}")
    e(f"    s_cselect_b32 s53, {'s53' if est else 's39'}, s38")
    e("L_nonotes:")
    if not T0:
        e(f"    s_cmp_lt_u32 s33, {(M if est else 3*M) + cons}")
        e("    s_cbranch_scc1 L_noset")
    e("    s_sub_u32 s38, s33, s56")
    e("    s_mul_i32 s38, s38, s53")
    e("    s_lshr_b32 s38, s38, 3")
    e("    s_add_u32 s38, s38, s52")
    e("    s_sub_u32 s38, s54, s38")
    e(f"    s_mul_i32 s39, s57, {BT}")
    e("    s_min_i32 s36, s35, s38")
    e("    s_sub_u32 s36, s36, s39")
    e("    s_sub_u32 s39, s38, s39")
    e(f"    s_cmp_gt_i32 s36, {up}")
    e("    s_addc_u32 s57, s57, 0")
    e(f"    s_cmp_lt_i32 s39, {-dn}")
    e("    s_subb_u32 s57, s57, 0")
    e("    s_max_i32 s57, s57, 0")
    e("    s_min_i32 s57, s57, 15")
    setwin()
    e("L_noset:")
    if est:
        e(f"    s_cmp_eq_u32 s33, {est}")
        e("    s_cselect_b32 s34, 0, s34")
    e("    s_cmp_lg_u32 s34, 0")
    e("    s_cbranch_scc1 L_next")
    e("    s_mov_b32 s59, s55")
    e("    s_mov_b32 s55, s54")
    e(f"    s_cmp_ge_u32 s2, {NR}")
    e("    s_cbranch_scc1 L_nowrite")
    e("    v_mov_b32 v16, s44")
    e("    v_mov_b32 v17, s44")
    e("    v_lshl_add_u32 v18, v4, 3, s58")
    e(f"    global_store_dwordx2 v18, v[16:17], s[{PW}:{PW+1}] sc0 sc1")
    e(f"    s_add_u32 s58, s58, {STR*NR}")
    e("L_nowrite:")
    e(f"    s_cmp_eq_u32 s33, {est or M}")
    e("    s_cbranch_scc1 L_next" if est else "    s_cbranch_scc1 L_noread")
    e(f"    global_load_dword v12, v9, s[{PW}:{PW+1}] sc0 sc1")
    e("L_noread:")
    e(f"    v_add_u32 v9, {STR*NR}, v9")
    e("L_next:")
    if tlb:
        e(f"    s_cmp_lg_u32 s33, {tlb}")
        e("    s_cbranch_scc1 L_notouch")
        e(f"    global_load_dword v21, v20, s[{PV}:{PV+1}] nt")
        e("L_notouch:")
    e(f"    s_add_u32 s31, s31, {9*SUB}")
    e(f"    s_add_u32 s33, s33, {SUB}")
    e("    s_cmp_lt_u32 s33, 252")
    e("    s_cbranch_scc1 L_step")
    e("    s_endpgm")
    VA = 8
    VT = 14
    VE = 20
    VB = 24
    VACC = 40
    VP = 66
    VO = 72
    VX = 76
    VS = 92
    NV = 124
    e("; ==================================================== consumers")
    e("L_consumer:")
    if not qearly:
        qsetup()
        qload()
    e("    v_and_b32 v0, 63, v0")
    e(f"    s_add_u32 s29, s30, {QL}")
    e(f"    v_lshl_add_u32 v{VQ+8}, v13, 7, s29")
    e(f"    v_lshl_add_u32 v{VQ+8}, v5, 3, v{VQ+8}")
    e("    s_lshr_b32 s3, s3, 7")
    e("    s_lshl_b32 s29, s3, 7")
    e("    v_lshl_add_u32 v19, v13, 8, s29")
    e("    v_lshrrev_b32 v13, 3, v4")
    e("    v_lshl_add_u32 v19, v13, 6, v19")
    e("    v_and_b32 v13, 1, v5")
    e("    v_lshl_add_u32 v19, v13, 5, v19")
    e("    v_lshrrev_b32 v6, 1, v5")
    e("    v_lshl_add_u32 v19, v6, 4, v19")
    e("    v_cmp_lt_u32 vcc, 7, v4")
    e("    v_bfe_u32 v6, v0, 2, 2")
    e("    v_lshl_add_u32 v12, v5, 3, v6")
    e("    v_lshl_add_u32 v6, v13, 2, v6")
    e("    s_lshl_b32 s29, s3, 2")
    e("    v_xor_b32 v6, s29, v6")
    e("    v_lshlrev_b32 v6, 5, v6")
    e("    v_lshl_add_u32 v6, v12, 8, v6")
    e("    v_and_b32 v13, 3, v0")
    e(f"    v_lshl_add_u32 v{VA}, v13, 3, v6")
    for j in range(1, 4):
        e(f"    v_xor_b32 v{VA+j}, {32*j}, v{VA}")
    e("    v_lshrrev_b32 v13, 2, v4")
    e("    v_and_b32 v13, 2, v13")
    e("    v_xor_b32 v13, v13, v5")
    e("    v_lshl_add_u32 v13, v4, 2, v13")
    e(f"    v_lshlrev_b32 v{VA+4}, 4, v13")
    e(f"    v_add_u32 v{VA+4}, 8192, v{VA+4}")
    e("    v_add_u32 v3, s29, v7")
    e("    v_xor_b32 v2, 4, v3")
    e(f"    s_add_u32 s16, s{PO}, s27")
    e(f"    s_addc_u32 s17, s{PO+1}, 0")
    e("    s_add_u32 s20, s16, 2048")
    e("    s_addc_u32 s21, s17, 0")
    e("    s_movk_i32 s18, 2048")
    e("    s_movk_i32 s22, 2048")
    e("    s_mov_b32 s31, 0")
    e("    s_mov_b32 s32, 9")
    e("    s_mov_b32 s33, 0")
    e("    s_mov_b32 s34, 0")
    e("    s_branch L_headk")
    e("L_fold:")
    e("    s_cmp_eq_u32 s28, 60")
    e("    s_nop 3")
    for i in range(16):
        t = VX + 2 * (i & 3)
        e(f"    v_cvt_f64_f32 v[{t}:{t+1}], v{VACC+i}")
        e(f"    v_mov_b32 v{VACC+i}, 0")
        e(f"    v_add_f64 v[{VS+2*i}:{VS+2*i+1}], v[{VS+2*i}:{VS+2*i+1}], v[{t}:{t+1}]")
    e("    s_cbranch_scc0 L_folded")
    for i in range(16):
        e(f"    v_cvt_f32_f64 v{VACC+i}, v[{VS+2*i}:{VS+2*i+1}]")
    e("L_folded:")
    if probe:
        e(f"    s_cmp_lg_u32 s31, {probe}")
        e("    s_cbranch_scc1 L_nopr")
        e("    s_memrealtime s[48:49]")
        e("    s_waitcnt lgkmcnt(0)")
        e("L_nopr:")
    e("    s_bitcmp0_b32 s31, 7")
    e("    s_cbranch_scc1 L_k")
    e(f"    s_cmp_lg_u32 s31, {late}")
    e("    s_cbranch_scc1 L_v")
    e(f"    buffer_store_dwordx4 v[{VO}:{VO+3}], v19, s[16:19], 0 offen")
    e("    s_branch L_v")

    def seg(tag, isK):
        for i in range(8):
            e(f"    v_mov_b64 v[{VACC+2*i}:{VACC+2*i+1}], 0")
        for i in range(16):
            e(f"    v_mov_b64 v[{VS+2*i}:{VS+2*i+1}], 0")
        e(f"L_{tag}:")
        for j in range(5):
            e(f"    v_add_u32 v{VT+j}, s34, v{VA+j}")
        e("    s_add_u32 s31, s31, 1")
        e("    v_mov_b32 v13, s31")
        e("    s_cmp_ge_u32 s33, s32")
        e(f"    s_cbranch_scc1 L_{tag}_go")
        if not isK:
            e("    s_cmp_lg_u32 s31, 256")
            e(f"    s_cbranch_scc1 L_{tag}_poll")
            e("    s_barrier")
            e(f"    s_branch L_{tag}_go")
        e(f"L_{tag}_poll:")
        e("    ds_read_b32 v6, v7")
        e("    s_waitcnt lgkmcnt(0)")
        e("    v_readfirstlane_b32 s33, v6")
        decode(33)
        e("    s_cmp_lt_u32 s33, s32")
        e(f"    s_cbranch_scc1 L_{tag}_poll")
        e(f"L_{tag}_go:")
        e(f"    ds_read_b128 v[{VE}:{VE+3}], v{VT+4}")
        for j in range(4):
            e(f"    ds_read_b64_tr_b16 v[{VB+4*j}:{VB+4*j+1}], v{VT+j}")
            e(f"    ds_read_b64_tr_b16 v[{VB+4*j+2}:{VB+4*j+3}], v{VT+j} offset:1024")
        e("    ds_write_b32 v3, v13 offset:16")
        e("    s_add_u32 s32, s32, 9")
        e(f"    s_add_u32 s34, s34, {SLOT}")
        e(f"    s_cmp_eq_u32 s34, {SLOT*S}")
        e("    s_cselect_b32 s34, 0, s34")
        e("    s_and_b32 s28, s31, 3")
        for j in range(4):
            e(f"    s_waitcnt lgkmcnt({7-2*j})")
            a = VACC + 4 * j
            t = VB + 4 * j
            if isK:
                e(f"    v_mfma_f32_16x16x32_bf16 v[{a}:{a+3}], v[{t}:{t+3}], v[{VE}:{VE+3}], v[{a}:{a+3}]")
            else:
                e(f"    v_mfma_f32_16x16x32_bf16 v[{a}:{a+3}], v[{VE}:{VE+3}], v[{t}:{t+3}], v[{a}:{a+3}]")
        e(f"    s_cbranch_scc1 L_{tag}")
        e("    s_and_b32 s28, s31, 63")
        e("    s_cbranch_scc1 L_fold")

    e("L_headk:")
    seg("k", True)
    T = VX
    e("    s_waitcnt vmcnt(0)")
    for j in range(4):
        e(f"    ds_read_b64 v[{VQ+2*j}:{VQ+2*j+1}], v{VQ+8} offset:{32*j}")
    e(f"    v_add_u32 v{VQ+8}, 1024, v{VQ+8}")
    for j in range(4):
        e(f"    v_cvt_pk_bf16_f32 v{T+2*j}, v{VACC+4*j}, v{VACC+4*j+1}")
        e(f"    v_cvt_pk_bf16_f32 v{T+2*j+1}, v{VACC+4*j+2}, v{VACC+4*j+3}")
    e("    s_lshl_b32 s28, s3, 10")
    e(f"    s_add_u32 s28, s28, {SCX - 8192}")
    e("    s_waitcnt lgkmcnt(0)")
    e(f"    v_mfma_f32_16x16x32_bf16 v[{T+8}:{T+11}], v[{T}:{T+3}], v[{VQ}:{VQ+3}], 0")
    e(f"    v_mfma_f32_16x16x32_bf16 v[{T+8}:{T+11}], v[{T+4}:{T+7}], v[{VQ+4}:{VQ+7}], v[{T+8}:{T+11}]")
    e(f"    v_add_u32 v14, s28, v{VA+4}")
    e("    v_xor_b32 v15, 16, v0")
    e("    v_xor_b32 v16, 32, v0")
    e("    v_lshlrev_b32 v15, 2, v15")
    e("    v_lshlrev_b32 v16, 2, v16")
    e("    s_xor_b32 s29, s3, 1")
    e("    s_lshl_b32 s29, s29, 10")
    e(f"    s_add_u32 s29, s29, {SCX - 8192}")
    e(f"    v_add_u32 v17, s29, v{VA+4}")
    e(f"    ds_write_b128 v14, v[{T+8}:{T+11}]")
    e("    ds_write_b32 v3, v13 offset:32")
    e("L_scpoll:")
    e("    ds_read_b32 v6, v2 offset:32")
    e("    s_waitcnt lgkmcnt(0)")
    e("    v_readfirstlane_b32 s28, v6")
    e("    s_cmp_lt_u32 s28, s31")
    e("    s_cbranch_scc1 L_scpoll")
    e(f"    ds_read_b128 v[{T}:{T+3}], v17")
    e("    s_waitcnt lgkmcnt(0)")
    for i in range(4):
        e(f"    v_add_f32 v{T+i}, v{T+i}, v{T+8+i}")

    def rnd():
        e(f"    v_cvt_pk_bf16_f32 v{T+4}, v{T}, v{T+1}")
        e(f"    v_cvt_pk_bf16_f32 v{T+5}, v{T+2}, v{T+3}")
        e(f"    v_lshlrev_b32 v{T}, 16, v{T+4}")
        e(f"    v_and_b32 v{T+1}, 0xffff0000, v{T+4}")
        e(f"    v_lshlrev_b32 v{T+2}, 16, v{T+5}")
        e(f"    v_and_b32 v{T+3}, 0xffff0000, v{T+5}")
    rnd()
    for i in range(4):
        e(f"    v_mul_f32 v{T+i}, 0x3db504f3, v{T+i}         ; 128^-0.5")
    rnd()
    e(f"    v_max_f32 v{T+4}, v{T}, v{T+1}")
    e(f"    v_max3_f32 v{T+4}, v{T+2}, v{T+3}, v{T+4}")
    e(f"    ds_bpermute_b32 v{T+5}, v15, v{T+4}")
    e("    s_waitcnt lgkmcnt(0)")
    e(f"    v_max_f32 v{T+4}, v{T+4}, v{T+5}")
    e(f"    ds_bpermute_b32 v{T+5}, v16, v{T+4}")
    e("    s_waitcnt lgkmcnt(0)")
    e(f"    v_max_f32 v{T+4}, v{T+4}, v{T+5}")
    for i in range(4):
        e(f"    v_sub_f32 v{T+i}, v{T+i}, v{T+4}")
    for i in range(4):
        e(f"    v_mul_f32 v{T+i}, 0x3fb8aa3b, v{T+i}         ; log2(e)")
    for i in range(4):
        e(f"    v_exp_f32 v{T+i}, v{T+i}")
    e("    s_nop 0")
    e(f"    v_add_f32 v{T+4}, v{T}, v{T+1}")
    e(f"    v_add_f32 v{T+5}, v{T+2}, v{T+3}")
    e(f"    v_add_f32 v{T+4}, v{T+4}, v{T+5}")
    e(f"    ds_bpermute_b32 v{T+5}, v15, v{T+4}")
    e("    s_waitcnt lgkmcnt(0)")
    e(f"    v_add_f32 v{T+4}, v{T+4}, v{T+5}")
    e(f"    ds_bpermute_b32 v{T+5}, v16, v{T+4}")
    e("    s_waitcnt lgkmcnt(0)")
    e(f"    v_add_f32 v{T+4}, v{T+4}, v{T+5}")
    e(f"    v_rcp_f32 v{T+4}, v{T+4}")
    e(f"    v_mov_b64 v[{VP}:{VP+1}], v[{VP+2}:{VP+3}]")
    for i in range(4):
        e(f"    v_mul_f32 v{T+i}, v{T+i}, v{T+4}")
    e(f"    v_cvt_pk_bf16_f32 v{VP+2}, v{T}, v{T+1}")
    e(f"    v_cvt_pk_bf16_f32 v{VP+3}, v{T+2}, v{T+3}")
    e("    s_cmp_eq_u32 s31, 64")
    e("    s_cbranch_scc1 L_headk")
    e("L_headv:")
    seg("v", False)
    e("    s_cmp_eq_u32 s31, 256")
    for j in range(4):
        e(f"    v_cvt_pk_bf16_f32 v{VB+2*j}, v{VACC+4*j}, v{VACC+4*j+1}")
        e(f"    v_cvt_pk_bf16_f32 v{VB+2*j+1}, v{VACC+4*j+2}, v{VACC+4*j+3}")
    for j in range(4):
        e(f"    v_mfma_f32_16x16x16_bf16 v[{T+4*j}:{T+4*j+3}], v[{VB+2*j}:{VB+2*j+1}], v[{VP}:{VP+1}], 0")
    e("    s_nop 6")
    for i in range(8):
        e(f"    v_cndmask_b32 v{T+i}, v{T+i}, v{T+8+i}, vcc")
    for j in range(2):
        e(f"    v_cvt_pk_bf16_f32 v{VO+2*j}, v{T+4*j}, v{T+4*j+1}")
    for j in range(2):
        e(f"    v_cvt_pk_bf16_f32 v{VO+2*j+1}, v{T+4*j+2}, v{T+4*j+3}")
    e(f"    v_permlane16_swap_b32 v{VO}, v{VO+2}")
    e(f"    v_mov_b64 v[{VP}:{VP+1}], v[{VP+2}:{VP+3}]")
    e(f"    v_permlane16_swap_b32 v{VO+1}, v{VO+3}")
    e("    s_cbranch_scc0 L_headv")
    e(f"    buffer_store_dwordx4 v[{VO}:{VO+3}], v19, s[20:23], 0 offen")
    if spin:
        e("    s_waitcnt vmcnt(0)")
        e("    s_memrealtime s[62:63]")
        e("    s_waitcnt lgkmcnt(0)")
        e("    s_sub_u32 s46, s62, s60" if not probe else "    s_sub_u32 s46, s48, s60")
        e(f"    s_mul_i32 s46, s46, {spin}")
        if probe:
            e("    s_add_u32 s46, s46, 10000")
        e("    s_min_u32 s46, s46, 200000")
        e("L_spin:")
        e("    s_memrealtime s[62:63]")
        e("    s_waitcnt lgkmcnt(0)")
        e("    s_sub_u32 s47, s62, s60")
        e("    s_cmp_lt_u32 s47, s46")
        e("    s_cbranch_scc1 L_spin")
    if stamp:
        if stamp == 2:
            e("    s_waitcnt vmcnt(0)")
        e("    s_memrealtime s[62:63]")
        e("    s_lshl_b32 s47, s2, 1")
        e("    s_add_u32 s46, s3, s47")
        e("    s_lshl_b32 s46, s46, 4")
        e("    s_waitcnt vmcnt(0) lgkmcnt(0)")
        e("    s_getreg_b32 s61, hwreg(HW_REG_XCC_ID)")
        e("    v_mov_b32 v12, s60")
        e("    v_mov_b32 v13, s61")
        e("    v_mov_b32 v14, s62" if not probe else "    v_mov_b32 v14, s48")
        e("    v_mov_b32 v15, 0")
        e("    v_mov_b32 v16, s46")
        e(f"    global_store_dwordx4 v16, v[12:15], s[{PW}:{PW+1}]")
    e("L_done:")
    e("    s_endpgm")
    e('.section .rodata,"a"')
    e(".p2align 6")
    e(f".amdhsa_kernel {NAME}_kernel")
    e(f"  .amdhsa_next_free_vgpr {NV}")
    e("  .amdhsa_next_free_sgpr 80")
    e(f"  .amdhsa_accum_offset {(NV+3)//4*4}")
    e("  .amdhsa_group_segment_fixed_size 0")
    e("  .amdhsa_kernarg_size 64")
    e("  .amdhsa_user_sgpr_count 2")
    e("  .amdhsa_user_sgpr_kernarg_segment_ptr 1")
    e("  .amdhsa_system_sgpr_workgroup_id_x 1")
    e("  .amdhsa_float_denorm_mode_32 3")
    e(".end_amdhsa_kernel")
    return "\n".join(L) + "\n"


if __name__ == "__main__":
    import sys
    kw = {}
    out = "/dev/stdout"
    for a in sys.argv[1:]:
        k, v = a.split("=")
        if k == "o":
            out = v
            continue
        try:
            v = int(v)
        except ValueError:
            pass
        kw[k] = v
    open(out, "w").write(gen(**kw))
```

```python
NAME = "standalone__low_rank_proj_linformer__sampling"

HEADER = """; Kernarg layout for this problem (64 bytes, ptrs only, base s[0:1]):
"""

DOC = """;
"""


def enc(w):
    return (w & 15) | ((w >> 4) << 22)


def gen(mid=24, wmin=21, wmax=38, sh=3, knee=32, up=120, dn=65, BT=107, psh=3, pc=12, cons=2, t0x=14,
        w="25.22.23.20.21.24.26.27", qearly=1, late=248, stamp=0, spin=0, rep=0, NB=2, probe=0, tlb=0, tn=1, est=2, P0=214, wa=0, wb_=0, st=1, rd0=0, inv0=40, g0=0, T0=0, bp=0, only=-1):
    L = []
    e = L.append
    S, U, M, NR, SUB = 16, 4, 8, 8, 2
    SLOT = 9216
    FLG = S * SLOT
    SCX = FLG + 256
    QL = SCX + 2048
    LDS = QL + 4096
    STR = 4352
    WSB = 1 << 20
    PQ, PK, PV, PE, PF, PO, PW = 64, 66, 68, 70, 72, 74, 78
    e(HEADER.rstrip())
    e(f"; @launch grid=(256,1,1) block=(256,1,1) lds={LDS}")
    e(DOC.rstrip())
    e('.amdgcn_target "amdgcn-amd-amdhsa--gfx950"')
    e(".text")
    e(f".globl {NAME}_kernel")
    e(".p2align 12                                ; keeps the start-up code inside one 4 KiB page")
    e(".p2align 8")
    e(f".type {NAME}_kernel,@function")
    e(f"{NAME}_kernel:")
    if spin or stamp:
        e("    s_memrealtime s[60:61]")
    e("    s_load_dwordx16 s[64:79], s[0:1], 0")
    e("    v_readfirstlane_b32 s3, v0")
    e("    s_cmp_ge_u32 s2, 256")
    e("    s_cbranch_scc1 L_done")
    e("    v_and_b32 v4, 15, v0")
    e("    v_bfe_u32 v5, v0, 4, 2")
    e(f"    v_mov_b32 v7, {FLG}")
    wb = [int(t) - 20 for t in str(w).split(".")]
    b = 0
    while b < 8:
        n = 1
        while b + n < 8 and wb[b + n] == wb[b] + n:
            n += 1
        t = 28 if b == 0 else 29
        if wb[b] == b:
            e(f"    s_and_b32 s{t}, s2, {((1 << n) - 1) << b}")
        else:
            e(f"    s_bfe_u32 s{t}, s2, {(n << 16) | b:#x}")
            if wb[b]:
                e(f"    s_lshl_b32 s{t}, s{t}, {wb[b]}")
        if b:
            e("    s_or_b32 s28, s28, s29" + ("                 ; s28 = pair of heads (bit permutation of the workgroup id)" if b + n == 8 else ""))
        b += n
    e("    s_mov_b32 s19, 0x00020000")
    e("    s_mov_b32 s23, 0x00020000")
    e("    s_cmp_eq_u32 s3, 0")
    e("    s_cbranch_scc1 L_loader")

    VQ = 56

    def qsetup():
        e("    v_bfe_u32 v13, v0, 3, 3")
        e("    s_and_b32 s30, s3, 128                 ; consumer * 128")
        e(f"    v_lshl_add_u32 v{VQ}, v13, 8, s30")
        e("    v_and_b32 v13, 7, v0")
        e(f"    v_lshl_add_u32 v{VQ}, v13, 4, v{VQ}")
        e("    s_lshl_b32 s30, s30, 4")
        e(f"    s_add_u32 m0, s30, {QL}")
        e("    s_lshl_b32 s27, s28, 12")
        e("    s_movk_i32 s18, 4096")

    def qload():
        e(f"    s_add_u32 s16, s{PQ}, s27")
        e(f"    s_addc_u32 s17, s{PQ+1}, 0")
        e(f"    buffer_load_dwordx4 v{VQ}, s[16:19], 0 offen nt lds")
        e("    s_add_u32 m0, m0, 1024")
        e("    s_movk_i32 s29, 2048")
        e(f"    buffer_load_dwordx4 v{VQ}, s[16:19], s29 offen nt lds")

    e("    s_memrealtime s[40:41]")
    e("    v_mov_b32 v8, 0")
    e("    v_mov_b32 v9, 0")
    if wa:
        e("    s_getreg_b32 s29, hwreg(HW_REG_XCC_ID, 2, 1)")
        e("    s_cmp_eq_u32 s29, 0")
        e(f"    s_mov_b32 s29, {enc(wb_):#x}")
        e(f"    s_cselect_b32 s29, {enc(wa):#x}, s29")
        e("    v_mov_b32 v10, s29")
    else:
        e(f"    v_mov_b32 v10, {enc(mid):#x}")
    e("    v_mov_b32 v11, 0")
    e("    ds_write_b32 v7, v8")
    e("    ds_write_b128 v7, v[8:11] offset:16")
    e("    ds_write_b64 v7, v[8:9] offset:32")
    if qearly:
        qsetup()
    e("    v_and_b32 v14, 31, v0")
    e("    s_bfe_u32 s29, s2, 0x40003")
    e("    s_lshl_b32 s29, s29, 7")
    e("    v_lshl_add_u32 v14, v14, 11, s29")
    e("    s_cmp_lg_u32 s3, 192")
    e("    s_waitcnt lgkmcnt(0)")
    e("    s_cbranch_scc1 L_meetc")
    e("    s_bitcmp1_b32 s2, 7")
    e(f"    s_cselect_b64 s[20:21], s[{PF}:{PF+1}], s[{PE}:{PE+1}]")
    e("    s_mov_b32 exec_hi, 0")
    e("    global_load_dword v15, v14, s[20:21]")
    if st:
        e(f"    s_cmp_ge_u32 s2, {NR}")
        e("    s_cbranch_scc1 L_nostart")
        e(f"    s_mul_i32 s29, s2, {STR}")
        e(f"    s_add_u32 s29, s29, {WSB - STR*NR}")
        e("    v_and_b32 v18, 31, v0")
        e("    v_mov_b32 v16, s40")
        e("    v_lshl_add_u32 v18, v18, 2, s29")
        e(f"    global_store_dword v18, v16, s[{PW}:{PW+1}] sc0 sc1")
        e("L_nostart:")
    e("    s_barrier")
    e("    s_branch L_balance")
    e("L_meetc:")
    if qearly:
        qload()
    e("    s_barrier")
    e("    s_branch L_consumer")
    VD = 16
    VF = 32
    e("; ==================================================== loader")
    e("L_loader:")
    e("    v_lshlrev_b32 v6, 1, v5")
    e("    v_xor_b32 v6, v6, v4")
    e("    v_lshlrev_b32 v6, 4, v6")
    e("    v_lshl_add_u32 v6, v5, 8, v6")
    e("    s_bfe_u32 s24, s2, 0x10007")
    e("    s_lshl_b32 s27, s24, 11")
    e("    s_add_u32 s30, s27, 2048")
    e("    s_sub_u32 s26, 2048, s27")
    e(f"    v_add_u32 v{VD}, s30, v6")
    e("    v_xor_b32 v6, 0x80, v6")
    e(f"    v_add_u32 v{VD+1}, s26, v6")
    e(f"    v_add_u32 v{VD+2}, 8192, v{VD}")
    e(f"    v_add_u32 v{VD+3}, 8192, v{VD+1}")
    e("    s_lshl_b32 s28, s28, 20")
    e("    s_sub_u32 s28, s28, 2048")
    e("    s_subb_u32 s27, 0, 0")
    e("    s_mov_b32 s18, 0x100800")
    e("    s_mov_b32 m0, 0")
    e("    v_lshrrev_b32 v4, 2, v0")
    e("    v_and_b32 v5, 2, v5")
    e("    v_xor_b32 v5, v5, v0")
    e("    v_xor_b32 v5, s24, v5")
    e(f"    v_lshlrev_b32 v{VF}, 12, v4")
    e("    v_and_b32 v6, 1, v5")
    e(f"    v_lshl_add_u32 v{VF}, v6, 4, v{VF}")
    e("    v_bfe_u32 v6, v5, 1, 1")
    e(f"    v_lshl_add_u32 v{VF}, v6, 6, v{VF}")
    e("    s_mov_b32 s22, 65536")
    e("    s_waitcnt lgkmcnt(0)")
    e(f"    s_add_u32 s16, s{PK}, s28")
    e(f"    s_addc_u32 s17, s{PK+1}, s27")

    def dtab(n):
        o = (n >> 1) << 15
        return [f"v_add_u32 v{VD+2*n}, {o}, v{VD+2*(n&1)}", f"v_add_u32 v{VD+2*n+1}, {o}, v{VD+2*(n&1)+1}"]

    def dload(n, so):
        o = (n & 3) * 1024
        off = f" offset:{o}" if o else ""
        v = VD + 2 * (n >> 2) + ((n >> 1) & 1)
        e(f"    buffer_load_dwordx4 v{v}, s[16:19], {so} offen{off} nt lds")

    pre = {3: [f"s_mov_b64 s[20:21], s[{PE}:{PE+1}]"]}
    for c in range(1, 4):
        pre.setdefault(8 * c - 5, []).extend(dtab(2 * c))
        pre.setdefault(8 * c - 1, []).extend(dtab(2 * c + 1) + [f"v_add_u32 v{VF+c}, {c << 8}, v{VF}"])
    for n in range(8 * NB):
        dload(n, "0")
        if n & 3 == 3:
            e("    s_add_u32 m0, m0, 4096")
            f = pre.pop(n)
            if n & 7 == 7:
                e("    " + f.pop(0))
                e(f"    buffer_load_dwordx4 v{VF + n//8}, s[20:23], 0 offen lds")
                e("    s_add_u32 m0, m0, 1024")
            for x in f:
                e("    " + x)
    for n in sorted(pre):
        for x in pre[n]:
            e("    " + x)
    e("    s_mov_b32 s31, 0")
    e("    s_mov_b32 s32, 0")
    e("    s_mov_b32 s33, 0")
    e(f"    s_mov_b32 s36, {enc(mid):#x}")
    e("    s_mov_b32 s37, 0xc0000f")
    e("    s_mov_b32 s38, 0xffff8001")
    e(f"    s_add_u32 s24, s{PV}, s28")
    e(f"    s_addc_u32 s25, s{PV+1}, s27")
    n_last = 8 * NB - 1
    e(f"    v_mov_b32 v12, {(n_last + n_last // 8) << 4}")
    e("    s_barrier")
    e(f"    s_branch L_p{8*NB}")
    e("L_body:")
    pubd = 0
    for n in range(8 * U):
        issued = n + n // 8
        e(f"L_p{n}:")
        e("    s_getreg_b32 s40, hwreg(HW_REG_IB_STS)")
        e("    s_and_b32 s40, s40, s37")
        e("    s_cmp_ge_u32 s40, s36")
        e(f"    s_cbranch_scc1 L_p{n}")
        dload(n, "s32")
        if n & 3 == 3:
            e("    s_add_u32 m0, m0, 4096")
            e(f"    v_add_u32 v12, {(issued - pubd) << 4}, v12")
            pubd = issued
            if n & 7 == 7:
                e(f"    buffer_load_dwordx4 v{VF + n//8}, s[20:23], s33 offen lds")
                e("    s_add_u32 m0, m0, 1024")
                if n != 8 * U - 1:
                    e("    s_waitcnt lgkmcnt(0)")
                    e("    v_readfirstlane_b32 s36, v10")
            e("    v_add_u32 v11, s40, v12")
            e("    ds_write_b32 v7, v11")
            if n == 8 * U - 5:
                e("    ds_read_b128 v[36:39], v7 offset:16")
            elif n & 7 == 3:
                e("    ds_read_b32 v10, v7 offset:24          ; window")
    e(f"    v_add_u32 v12, {(9*U - pubd) << 4}, v12")
    e(f"    s_add_u32 s31, s31, {U}")
    e("    s_cmp_eq_u32 s31, 256")
    e("    s_cbranch_scc1 L_drain")
    e(f"    s_cmp_eq_u32 m0, {SLOT*S}")
    e("    s_cselect_b32 m0, 0, m0")
    e("    s_bitcmp1_b32 s31, 7")
    e("    s_cselect_b64 s[16:17], s[24:25], s[16:17]")
    e(f"    s_cselect_b64 s[20:21], s[{PF}:{PF+1}], s[20:21]")
    e("    s_bfe_u32 s30, s31, 0x40002")
    e("    s_cselect_b32 s38, s38, 0xffff8000")
    e("L_chkfree:")
    e("    s_waitcnt lgkmcnt(0)")
    e("    v_min_u32 v36, v36, v37")
    e("    v_readfirstlane_b32 s36, v38")
    e("    v_readfirstlane_b32 s29, v36")
    e("    v_readfirstlane_b32 s39, v39")
    e(f"    s_add_u32 s29, s29, {S - U}")
    e("    s_cmp_gt_u32 s31, s29")
    e("    s_cbranch_scc1 L_full")
    e("    s_add_u32 s30, s30, s39")
    e("    s_ff0_i32_b32 s29, s38")
    e("    s_bitcmp1_b32 s38, s30")
    e("    s_cselect_b32 s30, s29, s30")
    e("    s_bitset1_b32 s38, s30")
    if t0x:
        e("    s_bitcmp1_b32 s30, 0")
        e(f"    s_cselect_b32 s29, {t0x}, 0")
        e("    s_xor_b32 s30, s30, s29")
    e("    s_bfe_u32 s29, s30, 0x10000")
    e("    s_lshl_b32 s32, s29, 12")
    e("    s_bfe_u32 s29, s30, 0x20001")
    e("    s_lshl_b32 s29, s29, 17")
    e("    s_or_b32 s32, s32, s29")
    e("    s_bfe_u32 s29, s30, 0x10003")
    e("    s_lshl_b32 s29, s29, 14")
    e("    s_or_b32 s32, s32, s29")
    e("    s_lshr_b32 s33, s32, 7")
    e("    s_bfe_u32 s29, s31, 0x10006")
    e("    s_lshl_b32 s29, s29, 19")
    e("    s_or_b32 s32, s32, s29")
    e("    s_branch L_body")
    e("L_full:")
    e("    s_getreg_b32 s40, hwreg(HW_REG_IB_STS)")
    e("    s_and_b32 s40, s40, s37")
    e("    v_add_u32 v11, s40, v12")
    e("    ds_write_b32 v7, v11")
    e("    ds_read_b128 v[36:39], v7 offset:16")
    e("    s_branch L_chkfree")
    e("L_drain:")
    for n in (36, 27, 18, 9):
        e(f"    v_mov_b32 v11, {(2304 - n) << 4}")
        e(f"    s_waitcnt vmcnt({n})")
        e("    ds_write_b32 v7, v11")
    e("    s_waitcnt vmcnt(0)")
    e("    s_barrier")
    e("    s_endpgm")

    def decode(d):
        e(f"    s_lshr_b32 s29, s{d}, 18")
        e(f"    s_and_b32 s30, s{d}, 15")
        e("    s_or_b32 s29, s29, s30")
        e(f"    s_bfe_u32 s{d}, s{d}, 0xe0004")
        e(f"    s_sub_u32 s{d}, s{d}, s29")

    def setwin():
        e(f"    s_sub_u32 s39, s38, {knee}")
        e("    s_ashr_i32 s39, s39, 1")
        e(f"    s_add_u32 s39, s39, {knee}")
        e("    s_min_i32 s38, s38, s39")
        e(f"    s_add_u32 s38, s38, {(mid << sh) + (1 << (sh-1))}")
        e(f"    s_ashr_i32 s38, s38, {sh}")
        e(f"    s_max_i32 s38, s38, {wmin}")
        e(f"    s_min_i32 s38, s38, {wmax}")
        e("    s_lshl_b32 s39, s38, 18")
        e("    s_or_b32 s38, s38, s39")
        e("    s_and_b32 s38, s38, 0xc0000f")
        e("    v_mov_b32 v10, s38")
        e("    v_mov_b32 v11, s57")
        e("    ds_write_b64 v7, v[10:11] offset:24")

    def mean8():
        e("    s_nop 1")
        for d in (1, 2, 4):
            e(f"    v_add_u32_dpp v12, v12, v12 row_ror:{d} row_mask:0xf bank_mask:0xf")
            e("    s_nop 1")
        e("    v_readfirstlane_b32 s38, v12")
        e("    s_lshr_b32 s38, s38, 3")

    e("; ==================================================== balancer")
    e("L_balance:")
    e(f"    v_and_b32 v9, {NR-1}, v0")
    e(f"    v_mul_u32_u24 v9, {STR}, v9")
    e(f"    v_add_u32 v9, {WSB}, v9")
    e(f"    s_mul_i32 s58, s2, {STR}")
    e(f"    s_add_u32 s58, s58, {WSB + (0 if est else STR*NR)}")
    e(f"    s_mov_b32 s31, {9*(est or M)}")
    e(f"    s_mov_b32 s33, {est or M}")
    e("    s_mov_b32 s52, 0")
    e(f"    s_mov_b32 s53, {P0 if est else 0}")
    e("    s_mov_b32 s55, 0")
    e("    s_mov_b32 s57, 0")
    if tlb:
        e("    s_lshl_b32 s29, s28, 20")
        e(f"    v_and_b32 v20, {tn-1}, v0")
        e(f"    v_lshl_add_u32 v20, v20, {20 - (tn.bit_length() - 1)}, s29")
    e("    s_mov_b32 exec_lo, 0xffff")
    e("    s_sub_u32 s40, s40, 300")
    if st:
        if rd0:
            e("L_first:")
            e("    ds_read_b32 v8, v7")
            e("    s_waitcnt lgkmcnt(0)")
            e("    v_readfirstlane_b32 s28, v8")
            decode(28)
            e(f"    s_cmp_lt_u32 s28, {rd0}")
            e("    s_cbranch_scc1 L_first")
        e(f"    v_subrev_u32 v13, {STR*NR}, v9")
        e("    s_memrealtime s[44:45]")
        e(f"    global_load_dword v12, v13, s[{PW}:{PW+1}] sc0 sc1")
        e("    s_waitcnt vmcnt(0) lgkmcnt(0)")
        e("    s_sub_u32 s54, s44, s40")
        e(f"    s_sub_u32 s54, s54, {inv0}")
        e("    v_subrev_u32 v12, s40, v12")
        e("    v_min_u32 v12, s54, v12")
        mean8()
        if T0:
            e(f"    s_add_u32 s52, s38, {T0}")
            e("    s_mov_b32 s56, 0")
            e("    s_mov_b32 s35, 0")
        else:
            e("    s_sub_u32 s38, 300, s38")
            if g0:
                e(f"    s_ashr_i32 s38, s38, {g0}")
            setwin()
    e("L_step:")
    e("    ds_read_b32 v8, v7")
    e("    s_waitcnt lgkmcnt(0)")
    e("    v_readfirstlane_b32 s28, v8")
    decode(28)
    e("    s_cmp_lt_u32 s28, s31")
    e("    s_cbranch_scc1 L_step")
    e("    s_memrealtime s[44:45]")
    e(f"    s_and_b32 s34, s33, {M-1}")
    e(f"    s_cmp_ge_u32 s33, {256 - M}")
    e("    s_cselect_b32 s34, -1, s34")
    e("    s_waitcnt lgkmcnt(0)")
    e("    s_sub_u32 s54, s44, s40")
    if bp:
        e(f"    s_cmp_lg_u32 s33, {bp}")
        e("    s_cbranch_scc1 L_nobp")
        e("    v_mov_b32 v8, s44")
        e("    ds_write_b32 v7, v8 offset:40")
        e("L_nobp:")
    e(f"    s_cmp_lg_u32 s34, {cons}")
    e("    s_cbranch_scc1 L_nonotes")
    e(f"    s_cmp_lt_u32 s33, {M if est else 2*M}")
    e("    s_cbranch_scc1 L_nonotes")
    e("    s_waitcnt vmcnt(0)")
    e("    v_subrev_u32 v12, s40, v12")
    e("    v_min_u32 v12, s55, v12")
    mean8()
    e("    s_sub_u32 s35, s59, s38")
    e("    s_sub_u32 s39, s38, s52")
    e("    s_mov_b32 s52, s38")
    e(f"    s_sub_u32 s56, s33, {M + cons}")
    if est:
        e(f"    s_max_u32 s56, s56, {est}")
    e("    s_sub_u32 s38, s39, s53")
    e(f"    s_max_i32 s38, s38, {-pc}")
    e(f"    s_min_i32 s38, s38, {pc}")
    e(f"    s_add_u32 s38, s38, {1 << (psh - 1)}")
    e(f"    s_ashr_i32 s38, s38, {psh}")
    e("    s_add_u32 s38, s38, s53")
    e(f"    s_cmp_lt_u32 s33, {3*M if est else 4*M}")
    e(f"    s_cselect_b32 s53, {'s53' if est else 's39'}, s38")
    e("L_nonotes:")
    if not T0:
        e(f"    s_cmp_lt_u32 s33, {(M if est else 3*M) + cons}")
        e("    s_cbranch_scc1 L_noset")
    e("    s_sub_u32 s38, s33, s56")
    e("    s_mul_i32 s38, s38, s53")
    e("    s_lshr_b32 s38, s38, 3")
    e("    s_add_u32 s38, s38, s52")
    e("    s_sub_u32 s38, s54, s38")
    e(f"    s_mul_i32 s39, s57, {BT}")
    e("    s_min_i32 s36, s35, s38")
    e("    s_sub_u32 s36, s36, s39")
    e("    s_sub_u32 s39, s38, s39")
    e(f"    s_cmp_gt_i32 s36, {up}")
    e("    s_addc_u32 s57, s57, 0")
    e(f"    s_cmp_lt_i32 s39, {-dn}")
    e("    s_subb_u32 s57, s57, 0")
    e("    s_max_i32 s57, s57, 0")
    e("    s_min_i32 s57, s57, 15")
    setwin()
    e("L_noset:")
    if est:
        e(f"    s_cmp_eq_u32 s33, {est}")
        e("    s_cselect_b32 s34, 0, s34")
    e("    s_cmp_lg_u32 s34, 0")
    e("    s_cbranch_scc1 L_next")
    e("    s_mov_b32 s59, s55")
    e("    s_mov_b32 s55, s54")
    e(f"    s_cmp_ge_u32 s2, {NR}")
    e("    s_cbranch_scc1 L_nowrite")
    e("    v_mov_b32 v16, s44")
    e("    v_mov_b32 v17, s44")
    e("    v_lshl_add_u32 v18, v4, 3, s58")
    e(f"    global_store_dwordx2 v18, v[16:17], s[{PW}:{PW+1}] sc0 sc1")
    e(f"    s_add_u32 s58, s58, {STR*NR}")
    e("L_nowrite:")
    e(f"    s_cmp_eq_u32 s33, {est or M}")
    e("    s_cbranch_scc1 L_next" if est else "    s_cbranch_scc1 L_noread")
    e(f"    global_load_dword v12, v9, s[{PW}:{PW+1}] sc0 sc1")
    e("L_noread:")
    e(f"    v_add_u32 v9, {STR*NR}, v9")
    e("L_next:")
    if tlb:
        e(f"    s_cmp_lg_u32 s33, {tlb}")
        e("    s_cbranch_scc1 L_notouch")
        e(f"    global_load_dword v21, v20, s[{PV}:{PV+1}] nt")
        e("L_notouch:")
    e(f"    s_add_u32 s31, s31, {9*SUB}")
    e(f"    s_add_u32 s33, s33, {SUB}")
    e("    s_cmp_lt_u32 s33, 252")
    e("    s_cbranch_scc1 L_step")
    e("    s_endpgm")
    VA = 8
    VT = 14
    VE = 20
    VB = 24
    VACC = 40
    VP = 66
    VO = 72
    VX = 76
    VS = 92
    NV = 124
    e("; ==================================================== consumers")
    e("L_consumer:")
    if not qearly:
        qsetup()
        qload()
    e("    v_and_b32 v0, 63, v0")
    e(f"    s_add_u32 s29, s30, {QL}")
    e(f"    v_lshl_add_u32 v{VQ+8}, v13, 7, s29")
    e(f"    v_lshl_add_u32 v{VQ+8}, v5, 3, v{VQ+8}")
    e("    s_lshr_b32 s3, s3, 7")
    e("    s_lshl_b32 s29, s3, 7")
    e("    v_lshl_add_u32 v19, v13, 8, s29")
    e("    v_lshrrev_b32 v13, 3, v4")
    e("    v_lshl_add_u32 v19, v13, 6, v19")
    e("    v_and_b32 v13, 1, v5")
    e("    v_lshl_add_u32 v19, v13, 5, v19")
    e("    v_lshrrev_b32 v6, 1, v5")
    e("    v_lshl_add_u32 v19, v6, 4, v19")
    e("    v_cmp_lt_u32 vcc, 7, v4")
    e("    v_bfe_u32 v6, v0, 2, 2")
    e("    v_lshl_add_u32 v12, v5, 3, v6")
    e("    v_lshl_add_u32 v6, v13, 2, v6")
    e("    s_lshl_b32 s29, s3, 2")
    e("    v_xor_b32 v6, s29, v6")
    e("    v_lshlrev_b32 v6, 5, v6")
    e("    v_lshl_add_u32 v6, v12, 8, v6")
    e("    v_and_b32 v13, 3, v0")
    e(f"    v_lshl_add_u32 v{VA}, v13, 3, v6")
    for j in range(1, 4):
        e(f"    v_xor_b32 v{VA+j}, {32*j}, v{VA}")
    e("    v_lshrrev_b32 v13, 2, v4")
    e("    v_and_b32 v13, 2, v13")
    e("    v_xor_b32 v13, v13, v5")
    e("    v_lshl_add_u32 v13, v4, 2, v13")
    e(f"    v_lshlrev_b32 v{VA+4}, 4, v13")
    e(f"    v_add_u32 v{VA+4}, 8192, v{VA+4}")
    e("    v_add_u32 v3, s29, v7")
    e("    v_xor_b32 v2, 4, v3")
    e(f"    s_add_u32 s16, s{PO}, s27")
    e(f"    s_addc_u32 s17, s{PO+1}, 0")
    e("    s_add_u32 s20, s16, 2048")
    e("    s_addc_u32 s21, s17, 0")
    e("    s_movk_i32 s18, 2048")
    e("    s_movk_i32 s22, 2048")
    e("    s_mov_b32 s31, 0")
    e("    s_mov_b32 s32, 9")
    e("    s_mov_b32 s33, 0")
    e("    s_mov_b32 s34, 0")
    e("    s_branch L_headk")
    e("L_fold:")
    e("    s_cmp_eq_u32 s28, 60")
    e("    s_nop 3")
    for i in range(16):
        t = VX + 2 * (i & 3)
        e(f"    v_cvt_f64_f32 v[{t}:{t+1}], v{VACC+i}")
        e(f"    v_mov_b32 v{VACC+i}, 0")
        e(f"    v_add_f64 v[{VS+2*i}:{VS+2*i+1}], v[{VS+2*i}:{VS+2*i+1}], v[{t}:{t+1}]")
    e("    s_cbranch_scc0 L_folded")
    for i in range(16):
        e(f"    v_cvt_f32_f64 v{VACC+i}, v[{VS+2*i}:{VS+2*i+1}]")
    e("L_folded:")
    if probe:
        e(f"    s_cmp_lg_u32 s31, {probe}")
        e("    s_cbranch_scc1 L_nopr")
        e("    s_memrealtime s[48:49]")
        e("    s_waitcnt lgkmcnt(0)")
        e("L_nopr:")
    e("    s_bitcmp0_b32 s31, 7")
    e("    s_cbranch_scc1 L_k")
    e(f"    s_cmp_lg_u32 s31, {late}")
    e("    s_cbranch_scc1 L_v")
    e(f"    buffer_store_dwordx4 v[{VO}:{VO+3}], v19, s[16:19], 0 offen")
    e("    s_branch L_v")

    def seg(tag, isK):
        for i in range(8):
            e(f"    v_mov_b64 v[{VACC+2*i}:{VACC+2*i+1}], 0")
        for i in range(16):
            e(f"    v_mov_b64 v[{VS+2*i}:{VS+2*i+1}], 0")
        e(f"L_{tag}:")
        for j in range(5):
            e(f"    v_add_u32 v{VT+j}, s34, v{VA+j}")
        e("    s_add_u32 s31, s31, 1")
        e("    v_mov_b32 v13, s31")
        e("    s_cmp_ge_u32 s33, s32")
        e(f"    s_cbranch_scc1 L_{tag}_go")
        if not isK:
            e("    s_cmp_lg_u32 s31, 256")
            e(f"    s_cbranch_scc1 L_{tag}_poll")
            e("    s_barrier")
            e(f"    s_branch L_{tag}_go")
        e(f"L_{tag}_poll:")
        e("    ds_read_b32 v6, v7")
        e("    s_waitcnt lgkmcnt(0)")
        e("    v_readfirstlane_b32 s33, v6")
        decode(33)
        e("    s_cmp_lt_u32 s33, s32")
        e(f"    s_cbranch_scc1 L_{tag}_poll")
        e(f"L_{tag}_go:")
        e(f"    ds_read_b128 v[{VE}:{VE+3}], v{VT+4}")
        for j in range(4):
            e(f"    ds_read_b64_tr_b16 v[{VB+4*j}:{VB+4*j+1}], v{VT+j}")
            e(f"    ds_read_b64_tr_b16 v[{VB+4*j+2}:{VB+4*j+3}], v{VT+j} offset:1024")
        e("    ds_write_b32 v3, v13 offset:16")
        e("    s_add_u32 s32, s32, 9")
        e(f"    s_add_u32 s34, s34, {SLOT}")
        e(f"    s_cmp_eq_u32 s34, {SLOT*S}")
        e("    s_cselect_b32 s34, 0, s34")
        e("    s_and_b32 s28, s31, 3")
        for j in range(4):
            e(f"    s_waitcnt lgkmcnt({7-2*j})")
            a = VACC + 4 * j
            t = VB + 4 * j
            if isK:
                e(f"    v_mfma_f32_16x16x32_bf16 v[{a}:{a+3}], v[{t}:{t+3}], v[{VE}:{VE+3}], v[{a}:{a+3}]")
            else:
                e(f"    v_mfma_f32_16x16x32_bf16 v[{a}:{a+3}], v[{VE}:{VE+3}], v[{t}:{t+3}], v[{a}:{a+3}]")
        e(f"    s_cbranch_scc1 L_{tag}")
        e("    s_and_b32 s28, s31, 63")
        e("    s_cbranch_scc1 L_fold")

    e("L_headk:")
    seg("k", True)
    T = VX
    e("    s_waitcnt vmcnt(0)")
    for j in range(4):
        e(f"    ds_read_b64 v[{VQ+2*j}:{VQ+2*j+1}], v{VQ+8} offset:{32*j}")
    e(f"    v_add_u32 v{VQ+8}, 1024, v{VQ+8}")
    for j in range(4):
        e(f"    v_cvt_pk_bf16_f32 v{T+2*j}, v{VACC+4*j}, v{VACC+4*j+1}")
        e(f"    v_cvt_pk_bf16_f32 v{T+2*j+1}, v{VACC+4*j+2}, v{VACC+4*j+3}")
    e("    s_lshl_b32 s28, s3, 10")
    e(f"    s_add_u32 s28, s28, {SCX - 8192}")
    e("    s_waitcnt lgkmcnt(0)")
    e(f"    v_mfma_f32_16x16x32_bf16 v[{T+8}:{T+11}], v[{T}:{T+3}], v[{VQ}:{VQ+3}], 0")
    e(f"    v_mfma_f32_16x16x32_bf16 v[{T+8}:{T+11}], v[{T+4}:{T+7}], v[{VQ+4}:{VQ+7}], v[{T+8}:{T+11}]")
    e(f"    v_add_u32 v14, s28, v{VA+4}")
    e("    v_xor_b32 v15, 16, v0")
    e("    v_xor_b32 v16, 32, v0")
    e("    v_lshlrev_b32 v15, 2, v15")
    e("    v_lshlrev_b32 v16, 2, v16")
    e("    s_xor_b32 s29, s3, 1")
    e("    s_lshl_b32 s29, s29, 10")
    e(f"    s_add_u32 s29, s29, {SCX - 8192}")
    e(f"    v_add_u32 v17, s29, v{VA+4}")
    e(f"    ds_write_b128 v14, v[{T+8}:{T+11}]")
    e("    ds_write_b32 v3, v13 offset:32")
    e("L_scpoll:")
    e("    ds_read_b32 v6, v2 offset:32")
    e("    s_waitcnt lgkmcnt(0)")
    e("    v_readfirstlane_b32 s28, v6")
    e("    s_cmp_lt_u32 s28, s31")
    e("    s_cbranch_scc1 L_scpoll")
    e(f"    ds_read_b128 v[{T}:{T+3}], v17")
    e("    s_waitcnt lgkmcnt(0)")
    for i in range(4):
        e(f"    v_add_f32 v{T+i}, v{T+i}, v{T+8+i}")

    def rnd():
        e(f"    v_cvt_pk_bf16_f32 v{T+4}, v{T}, v{T+1}")
        e(f"    v_cvt_pk_bf16_f32 v{T+5}, v{T+2}, v{T+3}")
        e(f"    v_lshlrev_b32 v{T}, 16, v{T+4}")
        e(f"    v_and_b32 v{T+1}, 0xffff0000, v{T+4}")
        e(f"    v_lshlrev_b32 v{T+2}, 16, v{T+5}")
        e(f"    v_and_b32 v{T+3}, 0xffff0000, v{T+5}")
    rnd()
    for i in range(4):
        e(f"    v_mul_f32 v{T+i}, 0x3db504f3, v{T+i}         ; 128^-0.5")
    rnd()
    e(f"    v_max_f32 v{T+4}, v{T}, v{T+1}")
    e(f"    v_max3_f32 v{T+4}, v{T+2}, v{T+3}, v{T+4}")
    e(f"    ds_bpermute_b32 v{T+5}, v15, v{T+4}")
    e("    s_waitcnt lgkmcnt(0)")
    e(f"    v_max_f32 v{T+4}, v{T+4}, v{T+5}")
    e(f"    ds_bpermute_b32 v{T+5}, v16, v{T+4}")
    e("    s_waitcnt lgkmcnt(0)")
    e(f"    v_max_f32 v{T+4}, v{T+4}, v{T+5}")
    for i in range(4):
        e(f"    v_sub_f32 v{T+i}, v{T+i}, v{T+4}")
    for i in range(4):
        e(f"    v_mul_f32 v{T+i}, 0x3fb8aa3b, v{T+i}         ; log2(e)")
    for i in range(4):
        e(f"    v_exp_f32 v{T+i}, v{T+i}")
    e("    s_nop 0")
    e(f"    v_add_f32 v{T+4}, v{T}, v{T+1}")
    e(f"    v_add_f32 v{T+5}, v{T+2}, v{T+3}")
    e(f"    v_add_f32 v{T+4}, v{T+4}, v{T+5}")
    e(f"    ds_bpermute_b32 v{T+5}, v15, v{T+4}")
    e("    s_waitcnt lgkmcnt(0)")
    e(f"    v_add_f32 v{T+4}, v{T+4}, v{T+5}")
    e(f"    ds_bpermute_b32 v{T+5}, v16, v{T+4}")
    e("    s_waitcnt lgkmcnt(0)")
    e(f"    v_add_f32 v{T+4}, v{T+4}, v{T+5}")
    e(f"    v_rcp_f32 v{T+4}, v{T+4}")
    e(f"    v_mov_b64 v[{VP}:{VP+1}], v[{VP+2}:{VP+3}]")
    for i in range(4):
        e(f"    v_mul_f32 v{T+i}, v{T+i}, v{T+4}")
    e(f"    v_cvt_pk_bf16_f32 v{VP+2}, v{T}, v{T+1}")
    e(f"    v_cvt_pk_bf16_f32 v{VP+3}, v{T+2}, v{T+3}")
    e("    s_cmp_eq_u32 s31, 64")
    e("    s_cbranch_scc1 L_headk")
    e("L_headv:")
    seg("v", False)
    e("    s_cmp_eq_u32 s31, 256")
    for j in range(4):
        e(f"    v_cvt_pk_bf16_f32 v{VB+2*j}, v{VACC+4*j}, v{VACC+4*j+1}")
        e(f"    v_cvt_pk_bf16_f32 v{VB+2*j+1}, v{VACC+4*j+2}, v{VACC+4*j+3}")
    for j in range(4):
        e(f"    v_mfma_f32_16x16x16_bf16 v[{T+4*j}:{T+4*j+3}], v[{VB+2*j}:{VB+2*j+1}], v[{VP}:{VP+1}], 0")
    e("    s_nop 6")
    for i in range(8):
        e(f"    v_cndmask_b32 v{T+i}, v{T+i}, v{T+8+i}, vcc")
    for j in range(2):
        e(f"    v_cvt_pk_bf16_f32 v{VO+2*j}, v{T+4*j}, v{T+4*j+1}")
    for j in range(2):
        e(f"    v_cvt_pk_bf16_f32 v{VO+2*j+1}, v{T+4*j+2}, v{T+4*j+3}")
    e(f"    v_permlane16_swap_b32 v{VO}, v{VO+2}")
    e(f"    v_mov_b64 v[{VP}:{VP+1}], v[{VP+2}:{VP+3}]")
    e(f"    v_permlane16_swap_b32 v{VO+1}, v{VO+3}")
    e("    s_cbranch_scc0 L_headv")
    e(f"    buffer_store_dwordx4 v[{VO}:{VO+3}], v19, s[20:23], 0 offen")
    if bp:
        probe = 1
        e("    ds_read_b32 v6, v7 offset:40")
        e("    s_waitcnt lgkmcnt(0)")
        e("    v_readfirstlane_b32 s48, v6")
    if spin:
        if only >= 0:
            e(f"    s_cmp_lg_u32 s2, {only}")
            e("    s_cbranch_scc1 L_done")
        e("    s_waitcnt vmcnt(0)")
        e("    s_memrealtime s[62:63]")
        e("    s_waitcnt lgkmcnt(0)")
        e("    s_sub_u32 s46, s62, s60" if not probe else "    s_sub_u32 s46, s48, s60")
        e(f"    s_mul_i32 s46, s46, {spin}")
        if probe:
            e("    s_add_u32 s46, s46, 10000")
        e("    s_min_u32 s46, s46, 200000")
        e("L_spin:")
        e("    s_memrealtime s[62:63]")
        e("    s_waitcnt lgkmcnt(0)")
        e("    s_sub_u32 s47, s62, s60")
        e("    s_cmp_lt_u32 s47, s46")
        e("    s_cbranch_scc1 L_spin")
    if stamp:
        if stamp == 2:
            e("    s_waitcnt vmcnt(0)")
        e("    s_memrealtime s[62:63]")
        e("    s_lshl_b32 s47, s2, 1")
        e("    s_add_u32 s46, s3, s47")
        e("    s_lshl_b32 s46, s46, 4")
        e("    s_waitcnt vmcnt(0) lgkmcnt(0)")
        e("    s_getreg_b32 s61, hwreg(HW_REG_XCC_ID)")
        e("    v_mov_b32 v12, s60")
        e("    v_mov_b32 v13, s61")
        e("    v_mov_b32 v14, s62" if not probe else "    v_mov_b32 v14, s48")
        e("    v_mov_b32 v15, 0")
        e("    v_mov_b32 v16, s46")
        e(f"    global_store_dwordx4 v16, v[12:15], s[{PW}:{PW+1}]")
    e("L_done:")
    e("    s_endpgm")
    e('.section .rodata,"a"')
    e(".p2align 6")
    e(f".amdhsa_kernel {NAME}_kernel")
    e(f"  .amdhsa_next_free_vgpr {NV}")
    e("  .amdhsa_next_free_sgpr 80")
    e(f"  .amdhsa_accum_offset {(NV+3)//4*4}")
    e("  .amdhsa_group_segment_fixed_size 0")
    e("  .amdhsa_kernarg_size 64")
    e("  .amdhsa_user_sgpr_count 2")
    e("  .amdhsa_user_sgpr_kernarg_segment_ptr 1")
    e("  .amdhsa_system_sgpr_workgroup_id_x 1")
    e("  .amdhsa_float_denorm_mode_32 3")
    e(".end_amdhsa_kernel")
    return "\n".join(L) + "\n"


if __name__ == "__main__":
    import sys
    kw = {}
    out = "/dev/stdout"
    for a in sys.argv[1:]:
        k, v = a.split("=")
        if k == "o":
            out = v
            continue
        try:
            v = int(v)
        except ValueError:
            pass
        kw[k] = v
    open(out, "w").write(gen(**kw))
```

```python
NAME = "standalone__low_rank_proj_linformer__sampling"

HEADER = """; Kernarg layout for this problem (64 bytes, ptrs only, base s[0:1]):
"""

DOC = """;
"""


def enc(w):
    return (w & 15) | ((w >> 4) << 22)


def gen(mid=24, wmin=21, wmax=38, sh=3, knee=32, up=120, dn=65, BT=107, psh=3, pc=12, cons=2, t0x=14,
        w="25.22.23.20.21.24.26.27", qearly=1, late=248, stamp=0, spin=0, rep=0, NB=2, probe=0, tlb=0, tn=1, est=2, P0=214, wa=0, wb_=0, st=1, rd0=0, inv0=40, g0=0, T0=0, bp=0, only=-1, slowc=0, slowone=0, fine=0, fa=0, fb=4, off=0, bsh=0, bcap=40, pre_=0, wfl='sc0+sc1', rfl='sc0+sc1', dup=0, rm=0, K0=48, al=1, STR=4352):
    L = []
    e = L.append
    S, U, M, NR, SUB = 16, 4, 8, 8, 2
    SLOT = 9216
    FLG = S * SLOT
    SCX = FLG + 256
    QL = SCX + 2048
    LDS = QL + 4096
    WSB = 1 << 20
    PQ, PK, PV, PE, PF, PO, PW = 64, 66, 68, 70, 72, 74, 78
    e(HEADER.rstrip())
    e(f"; @launch grid=(256,1,1) block=(256,1,1) lds={LDS}")
    e(DOC.rstrip())
    e('.amdgcn_target "amdgcn-amd-amdhsa--gfx950"')
    e(".text")
    e(f".globl {NAME}_kernel")
    e(".p2align 12                                ; keeps the start-up code inside one 4 KiB page")
    e(".p2align 8")
    e(f".type {NAME}_kernel,@function")
    e(f"{NAME}_kernel:")
    if spin or stamp:
        e("    s_memrealtime s[60:61]")
    e("    s_load_dwordx16 s[64:79], s[0:1], 0")
    e("    v_readfirstlane_b32 s3, v0")
    e("    s_cmp_ge_u32 s2, 256")
    e("    s_cbranch_scc1 L_done")
    e("    v_and_b32 v4, 15, v0")
    e("    v_bfe_u32 v5, v0, 4, 2")
    e(f"    v_mov_b32 v7, {FLG}")
    wb = [int(t) - 20 for t in str(w).split(".")]
    b = 0
    while b < 8:
        n = 1
        while b + n < 8 and wb[b + n] == wb[b] + n:
            n += 1
        t = 28 if b == 0 else 29
        if wb[b] == b:
            e(f"    s_and_b32 s{t}, s2, {((1 << n) - 1) << b}")
        else:
            e(f"    s_bfe_u32 s{t}, s2, {(n << 16) | b:#x}")
            if wb[b]:
                e(f"    s_lshl_b32 s{t}, s{t}, {wb[b]}")
        if b:
            e("    s_or_b32 s28, s28, s29" + ("                 ; s28 = pair of heads (bit permutation of the workgroup id)" if b + n == 8 else ""))
        b += n
    e("    s_mov_b32 s19, 0x00020000")
    e("    s_mov_b32 s23, 0x00020000")
    e("    s_cmp_eq_u32 s3, 0")
    e("    s_cbranch_scc1 L_loader")

    VQ = 56

    def qsetup():
        e("    v_bfe_u32 v13, v0, 3, 3")
        e("    s_and_b32 s30, s3, 128                 ; consumer * 128")
        e(f"    v_lshl_add_u32 v{VQ}, v13, 8, s30")
        e("    v_and_b32 v13, 7, v0")
        e(f"    v_lshl_add_u32 v{VQ}, v13, 4, v{VQ}")
        e("    s_lshl_b32 s30, s30, 4")
        e(f"    s_add_u32 m0, s30, {QL}")
        e("    s_lshl_b32 s27, s28, 12")
        e("    s_movk_i32 s18, 4096")

    def qload():
        e(f"    s_add_u32 s16, s{PQ}, s27")
        e(f"    s_addc_u32 s17, s{PQ+1}, 0")
        e(f"    buffer_load_dwordx4 v{VQ}, s[16:19], 0 offen nt lds")
        e("    s_add_u32 m0, m0, 1024")
        e("    s_movk_i32 s29, 2048")
        e(f"    buffer_load_dwordx4 v{VQ}, s[16:19], s29 offen nt lds")

    e("    s_memrealtime s[40:41]")
    e("    v_mov_b32 v8, 0")
    e("    v_mov_b32 v9, 0")
    if wa:
        e("    s_getreg_b32 s29, hwreg(HW_REG_XCC_ID, 2, 1)")
        e("    s_cmp_eq_u32 s29, 0")
        e(f"    s_mov_b32 s29, {enc(wb_):#x}")
        e(f"    s_cselect_b32 s29, {enc(wa):#x}, s29")
        e("    v_mov_b32 v10, s29")
    else:
        e(f"    v_mov_b32 v10, {enc(mid):#x}")
    e("    v_mov_b32 v11, 0")
    e("    ds_write_b32 v7, v8")
    e("    ds_write_b128 v7, v[8:11] offset:16")
    e("    ds_write_b64 v7, v[8:9] offset:32")
    if qearly:
        qsetup()
    e("    v_and_b32 v14, 31, v0")
    e("    s_bfe_u32 s29, s2, 0x40003")
    e("    s_lshl_b32 s29, s29, 7")
    e("    v_lshl_add_u32 v14, v14, 11, s29")
    e("    s_cmp_lg_u32 s3, 192")
    e("    s_waitcnt lgkmcnt(0)")
    e("    s_cbranch_scc1 L_meetc")
    e("    s_bitcmp1_b32 s2, 7")
    e(f"    s_cselect_b64 s[20:21], s[{PF}:{PF+1}], s[{PE}:{PE+1}]")
    e("    s_mov_b32 exec_hi, 0")
    e("    global_load_dword v15, v14, s[20:21]")
    if st:
        e(f"    s_cmp_ge_u32 s2, {NR}")
        e("    s_cbranch_scc1 L_nostart")
        e(f"    s_mul_i32 s29, s2, {STR}")
        e(f"    s_add_u32 s29, s29, {WSB - STR*NR}")
        e("    v_and_b32 v18, 31, v0")
        e("    v_mov_b32 v16, s40")
        e("    v_lshl_add_u32 v18, v18, 2, s29")
        e(f"    global_store_dword v18, v16, s[{PW}:{PW+1}] sc0 sc1")
        e("L_nostart:")
    e("    s_barrier")
    e("    s_branch L_balance")
    e("L_meetc:")
    if qearly:
        qload()
    e("    s_barrier")
    e("    s_branch L_consumer")
    VD = 16
    VF = 32
    e("; ==================================================== loader")
    e("L_loader:")
    e("    v_lshlrev_b32 v6, 1, v5")
    e("    v_xor_b32 v6, v6, v4")
    e("    v_lshlrev_b32 v6, 4, v6")
    e("    v_lshl_add_u32 v6, v5, 8, v6")
    e("    s_bfe_u32 s24, s2, 0x10007")
    e("    s_lshl_b32 s27, s24, 11")
    e("    s_add_u32 s30, s27, 2048")
    e("    s_sub_u32 s26, 2048, s27")
    e(f"    v_add_u32 v{VD}, s30, v6")
    e("    v_xor_b32 v6, 0x80, v6")
    e(f"    v_add_u32 v{VD+1}, s26, v6")
    e(f"    v_add_u32 v{VD+2}, 8192, v{VD}")
    e(f"    v_add_u32 v{VD+3}, 8192, v{VD+1}")
    e("    s_lshl_b32 s28, s28, 20")
    e("    s_sub_u32 s28, s28, 2048")
    e("    s_subb_u32 s27, 0, 0")
    e("    s_mov_b32 s18, 0x100800")
    e("    s_mov_b32 m0, 0")
    e("    v_lshrrev_b32 v4, 2, v0")
    e("    v_and_b32 v5, 2, v5")
    e("    v_xor_b32 v5, v5, v0")
    e("    v_xor_b32 v5, s24, v5")
    e(f"    v_lshlrev_b32 v{VF}, 12, v4")
    e("    v_and_b32 v6, 1, v5")
    e(f"    v_lshl_add_u32 v{VF}, v6, 4, v{VF}")
    e("    v_bfe_u32 v6, v5, 1, 1")
    e(f"    v_lshl_add_u32 v{VF}, v6, 6, v{VF}")
    e("    s_mov_b32 s22, 65536")
    e("    s_waitcnt lgkmcnt(0)")
    e(f"    s_add_u32 s16, s{PK}, s28")
    e(f"    s_addc_u32 s17, s{PK+1}, s27")

    def dtab(n):
        o = (n >> 1) << 15
        return [f"v_add_u32 v{VD+2*n}, {o}, v{VD+2*(n&1)}", f"v_add_u32 v{VD+2*n+1}, {o}, v{VD+2*(n&1)+1}"]

    def dload(n, so):
        o = (n & 3) * 1024
        off = f" offset:{o}" if o else ""
        v = VD + 2 * (n >> 2) + ((n >> 1) & 1)
        e(f"    buffer_load_dwordx4 v{v}, s[16:19], {so} offen{off} nt lds")

    pre = {3: [f"s_mov_b64 s[20:21], s[{PE}:{PE+1}]"]}
    for c in range(1, 4):
        pre.setdefault(8 * c - 5, []).extend(dtab(2 * c))
        pre.setdefault(8 * c - 1, []).extend(dtab(2 * c + 1) + [f"v_add_u32 v{VF+c}, {c << 8}, v{VF}"])
    for n in range(8 * NB):
        dload(n, "0")
        if n & 3 == 3:
            e("    s_add_u32 m0, m0, 4096")
            f = pre.pop(n)
            if n & 7 == 7:
                e("    " + f.pop(0))
                e(f"    buffer_load_dwordx4 v{VF + n//8}, s[20:23], 0 offen lds")
                e("    s_add_u32 m0, m0, 1024")
            for x in f:
                e("    " + x)
    for n in sorted(pre):
        for x in pre[n]:
            e("    " + x)
    e("    s_mov_b32 s31, 0")
    e("    s_mov_b32 s32, 0")
    e("    s_mov_b32 s33, 0")
    e(f"    s_mov_b32 s36, {enc(mid):#x}")
    e("    s_mov_b32 s37, 0xc0000f")
    e("    s_mov_b32 s38, 0xffff8001")
    e(f"    s_add_u32 s24, s{PV}, s28")
    e(f"    s_addc_u32 s25, s{PV+1}, s27")
    n_last = 8 * NB - 1
    e(f"    v_mov_b32 v12, {(n_last + n_last // 8) << 4}")
    e("    s_barrier")
    e(f"    s_branch L_p{8*NB}")
    e("L_body:")
    pubd = 0
    for n in range(8 * U):
        issued = n + n // 8
        e(f"L_p{n}:")
        e("    s_getreg_b32 s40, hwreg(HW_REG_IB_STS)")
        e("    s_and_b32 s40, s40, s37")
        e("    s_cmp_ge_u32 s40, s36")
        e(f"    s_cbranch_scc1 L_p{n}")
        dload(n, "s32")
        if n & 3 == 3:
            e("    s_add_u32 m0, m0, 4096")
            e(f"    v_add_u32 v12, {(issued - pubd) << 4}, v12")
            pubd = issued
            if n & 7 == 7:
                e(f"    buffer_load_dwordx4 v{VF + n//8}, s[20:23], s33 offen lds")
                e("    s_add_u32 m0, m0, 1024")
                if n != 8 * U - 1:
                    e("    s_waitcnt lgkmcnt(0)")
                    e("    v_readfirstlane_b32 s36, v10")
            e("    v_add_u32 v11, s40, v12")
            e("    ds_write_b32 v7, v11")
            if n == 8 * U - 5:
                e("    ds_read_b128 v[36:39], v7 offset:16")
            elif n & 7 == 3:
                e("    ds_read_b32 v10, v7 offset:24          ; window")
    e(f"    v_add_u32 v12, {(9*U - pubd) << 4}, v12")
    e(f"    s_add_u32 s31, s31, {U}")
    e("    s_cmp_eq_u32 s31, 256")
    e("    s_cbranch_scc1 L_drain")
    e(f"    s_cmp_eq_u32 m0, {SLOT*S}")
    e("    s_cselect_b32 m0, 0, m0")
    e("    s_bitcmp1_b32 s31, 7")
    e("    s_cselect_b64 s[16:17], s[24:25], s[16:17]")
    e(f"    s_cselect_b64 s[20:21], s[{PF}:{PF+1}], s[20:21]")
    e("    s_bfe_u32 s30, s31, 0x40002")
    e("    s_cselect_b32 s38, s38, 0xffff8000")
    e("L_chkfree:")
    e("    s_waitcnt lgkmcnt(0)")
    e("    v_min_u32 v36, v36, v37")
    e("    v_readfirstlane_b32 s36, v38")
    e("    v_readfirstlane_b32 s29, v36")
    e("    v_readfirstlane_b32 s39, v39")
    e(f"    s_add_u32 s29, s29, {S - U}")
    e("    s_cmp_gt_u32 s31, s29")
    e("    s_cbranch_scc1 L_full")
    e("    s_add_u32 s30, s30, s39")
    e("    s_ff0_i32_b32 s29, s38")
    e("    s_bitcmp1_b32 s38, s30")
    e("    s_cselect_b32 s30, s29, s30")
    e("    s_bitset1_b32 s38, s30")
    if t0x:
        e("    s_bitcmp1_b32 s30, 0")
        e(f"    s_cselect_b32 s29, {t0x}, 0")
        e("    s_xor_b32 s30, s30, s29")
    e("    s_bfe_u32 s29, s30, 0x10000")
    e("    s_lshl_b32 s32, s29, 12")
    e("    s_bfe_u32 s29, s30, 0x20001")
    e("    s_lshl_b32 s29, s29, 17")
    e("    s_or_b32 s32, s32, s29")
    e("    s_bfe_u32 s29, s30, 0x10003")
    e("    s_lshl_b32 s29, s29, 14")
    e("    s_or_b32 s32, s32, s29")
    e("    s_lshr_b32 s33, s32, 7")
    e("    s_bfe_u32 s29, s31, 0x10006")
    e("    s_lshl_b32 s29, s29, 19")
    e("    s_or_b32 s32, s32, s29")
    e("    s_branch L_body")
    e("L_full:")
    e("    s_getreg_b32 s40, hwreg(HW_REG_IB_STS)")
    e("    s_and_b32 s40, s40, s37")
    e("    v_add_u32 v11, s40, v12")
    e("    ds_write_b32 v7, v11")
    e("    ds_read_b128 v[36:39], v7 offset:16")
    e("    s_branch L_chkfree")
    e("L_drain:")
    for n in (36, 27, 18, 9):
        e(f"    v_mov_b32 v11, {(2304 - n) << 4}")
        e(f"    s_waitcnt vmcnt({n})")
        e("    ds_write_b32 v7, v11")
    e("    s_waitcnt vmcnt(0)")
    e("    s_barrier")
    e("    s_endpgm")

    def decode(d):
        e(f"    s_lshr_b32 s29, s{d}, 18")
        e(f"    s_and_b32 s30, s{d}, 15")
        e("    s_or_b32 s29, s29, s30")
        e(f"    s_bfe_u32 s{d}, s{d}, 0xe0004")
        e(f"    s_sub_u32 s{d}, s{d}, s29")

    def setwin(o=0):
        e(f"    s_sub_u32 s39, s38, {knee}")
        e("    s_ashr_i32 s39, s39, 1")
        e(f"    s_add_u32 s39, s39, {knee}")
        e("    s_min_i32 s38, s38, s39")
        e(f"    s_add_u32 s38, s38, {(mid << sh) + (1 << (sh-1)) + o}")
        e(f"    s_ashr_i32 s38, s38, {sh}")
        e(f"    s_max_i32 s38, s38, {wmin}")
        e(f"    s_min_i32 s38, s38, {wmax}")
        e("    s_lshl_b32 s39, s38, 18")
        e("    s_or_b32 s38, s38, s39")
        e("    s_and_b32 s38, s38, 0xc0000f")
        e("    v_mov_b32 v10, s38")
        e("    v_mov_b32 v11, s57")
        e("    ds_write_b64 v7, v[10:11] offset:24")

    def mean8(mx=0):
        if mx:
            e("    v_mov_b32 v13, v12")
        e("    s_nop 1")
        for d in (1, 2, 4):
            e(f"    v_add_u32_dpp v12, v12, v12 row_ror:{d} row_mask:0xf bank_mask:0xf")
            if mx:
                e(f"    v_max_u32_dpp v13, v13, v13 row_ror:{d} row_mask:0xf bank_mask:0xf")
            e("    s_nop 1")
        e("    v_readfirstlane_b32 s38, v12")
        if mx:
            e("    v_readfirstlane_b32 s47, v13")
        e("    s_lshr_b32 s38, s38, 3")
        if mx:
            e("    s_sub_u32 s47, s47, s38")
            e(f"    s_lshr_b32 s47, s47, {bsh}")
            e(f"    s_min_u32 s47, s47, {bcap}")

    e("; ==================================================== balancer")
    e("L_balance:")
    e(f"    v_and_b32 v9, {NR-1}, v0")
    e(f"    v_mul_u32_u24 v9, {STR}, v9")
    e(f"    v_add_u32 v9, {WSB}, v9")
    e(f"    s_mul_i32 s58, s2, {STR}")
    e(f"    s_add_u32 s58, s58, {WSB + (0 if est else STR*NR)}")
    e(f"    s_mov_b32 s31, {9*(est or M)}")
    e(f"    s_mov_b32 s33, {est or M}")
    e("    s_mov_b32 s52, 0")
    e(f"    s_mov_b32 s53, {(P0 * 8 if fine else P0) if est else 0}")
    e("    s_mov_b32 s55, 0")
    e("    s_mov_b32 s57, 0")
    if tlb:
        e("    s_lshl_b32 s29, s28, 20")
        e(f"    v_and_b32 v20, {tn-1}, v0")
        e(f"    v_lshl_add_u32 v20, v20, {20 - (tn.bit_length() - 1)}, s29")
    if pre_:
        e(f"    s_cmp_ge_u32 s2, {NR}")
        e("    s_cbranch_scc1 L_nopre")
        e("    v_and_b32 v22, 31, v0")
        e(f"    v_mul_u32_u24 v22, {STR*NR}, v22")
        e("    v_add_u32 v22, s58, v22")
        e(f"    global_load_dword v23, v22, s[{PW}:{PW+1}]")
        e("L_nopre:")
    e("    s_mov_b32 exec_lo, 0xffff")
    e("    s_sub_u32 s40, s40, 300")
    if st:
        if rd0:
            e("L_first:")
            e("    ds_read_b32 v8, v7")
            e("    s_waitcnt lgkmcnt(0)")
            e("    v_readfirstlane_b32 s28, v8")
            decode(28)
            e(f"    s_cmp_lt_u32 s28, {rd0}")
            e("    s_cbranch_scc1 L_first")
        e(f"    v_subrev_u32 v13, {STR*NR}, v9")
        e("    s_memrealtime s[44:45]")
        e(f"    global_load_dword v12, v13, s[{PW}:{PW+1}] sc0 sc1")
        e("    s_waitcnt vmcnt(0) lgkmcnt(0)")
        e("    s_sub_u32 s54, s44, s40")
        e(f"    s_sub_u32 s54, s54, {inv0}")
        e("    v_subrev_u32 v12, s40, v12")
        e("    v_min_u32 v12, s54, v12")
        mean8()
        if T0:
            e(f"    s_add_u32 s52, s38, {T0}")
            e("    s_mov_b32 s56, 0")
            e("    s_mov_b32 s35, 0")
        else:
            e("    s_sub_u32 s38, 300, s38")
            if g0:
                e(f"    s_ashr_i32 s38, s38, {g0}")
            setwin()
    e("L_step:")
    e("    ds_read_b32 v8, v7")
    e("    s_waitcnt lgkmcnt(0)")
    e("    v_readfirstlane_b32 s28, v8")
    decode(28)
    e("    s_cmp_lt_u32 s28, s31")
    e("    s_cbranch_scc1 L_step")
    e("    s_memrealtime s[44:45]")
    e(f"    s_and_b32 s34, s33, {M-1}")
    e(f"    s_cmp_ge_u32 s33, {256 - M}")
    e("    s_cselect_b32 s34, -1, s34")
    e("    s_waitcnt lgkmcnt(0)")
    e("    s_sub_u32 s54, s44, s40")
    if bp:
        e(f"    s_cmp_lg_u32 s33, {bp}")
        e("    s_cbranch_scc1 L_nobp")
        e("    v_mov_b32 v8, s44")
        e("    ds_write_b32 v7, v8 offset:40")
        e("L_nobp:")
    e(f"    s_cmp_lg_u32 s34, {cons}")
    e("    s_cbranch_scc1 L_nonotes")
    e(f"    s_cmp_lt_u32 s33, {M if est else 2*M}")
    e("    s_cbranch_scc1 L_nonotes")
    e("    s_waitcnt vmcnt(0)")
    e("    v_subrev_u32 v12, s40, v12")
    e("    v_min_u32 v12, s55, v12")
    mean8(bsh)
    if rm and al:
        e("    s_add_u32 s36, s52, s53")
        e("    s_sub_u32 s39, s38, s36")
        e(f"    s_ashr_i32 s37, s39, {al}")
        e("    s_add_u32 s36, s36, s37")
        e("    s_abs_i32 s39, s39")
        e("    s_cmp_gt_u32 s39, 60")
        e("    s_cselect_b32 s36, s38, s36")
        e(f"    s_cmp_lt_u32 s33, {K0 + M}")
        e("    s_cselect_b32 s38, s38, s36")
    e("    s_sub_u32 s35, s59, s38")
    e("    s_sub_u32 s39, s38, s52")
    e("    s_mov_b32 s52, s38")
    e(f"    s_sub_u32 s56, s33, {M + cons}")
    if est:
        e(f"    s_max_u32 s56, s56, {est}")
    if fine:
        e(f"    s_add_u32 s38, s53, {fb}")
        e("    s_lshr_b32 s38, s38, 3")
        e("    s_sub_u32 s38, s39, s38")
        e(f"    s_max_i32 s38, s38, {-pc}")
        e(f"    s_min_i32 s38, s38, {pc}")
        e(f"    s_cmp_lt_u32 s33, {3*M}")
        e("    s_cselect_b32 s38, 0, s38")
        e("    s_add_u32 s53, s53, s38")
    else:
        e("    s_sub_u32 s38, s39, s53")
        e(f"    s_max_i32 s38, s38, {-pc}")
        e(f"    s_min_i32 s38, s38, {pc}")
        e(f"    s_add_u32 s38, s38, {1 << (psh - 1)}")
        e(f"    s_ashr_i32 s38, s38, {psh}")
        e("    s_add_u32 s38, s38, s53")
        e(f"    s_cmp_lt_u32 s33, {3*M if est else 4*M}")
        e(f"    s_cselect_b32 s53, {'s53' if est else 's39'}, s38")
    e("L_nonotes:")
    if not T0:
        e(f"    s_cmp_lt_u32 s33, {(M if est else 3*M) + cons}")
        e("    s_cbranch_scc1 L_noset")
    e("    s_sub_u32 s38, s33, s56")
    e("    s_mul_i32 s38, s38, s53")
    e(f"    s_lshr_b32 s38, s38, {6 if fine else 3}")
    e("    s_add_u32 s38, s38, s52")
    e("    s_sub_u32 s38, s54, s38")
    e(f"    s_mul_i32 s39, s57, {BT}")
    e("    s_min_i32 s36, s35, s38")
    e("    s_sub_u32 s36, s36, s39")
    e("    s_sub_u32 s39, s38, s39")
    e(f"    s_cmp_gt_i32 s36, {up}")
    e("    s_addc_u32 s57, s57, 0")
    e(f"    s_cmp_lt_i32 s39, {-dn}")
    e("    s_subb_u32 s57, s57, 0")
    e("    s_max_i32 s57, s57, 0")
    e("    s_min_i32 s57, s57, 15")
    if bsh:
        e("    s_sub_u32 s38, s38, s47")
    setwin(off)
    e("L_noset:")
    if est:
        e(f"    s_cmp_eq_u32 s33, {est}")
        e("    s_cselect_b32 s34, 0, s34")
    e("    s_cmp_lg_u32 s34, 0")
    e("    s_cbranch_scc1 L_next")
    e("    s_mov_b32 s59, s55")
    e("    s_mov_b32 s55, s54")
    lo = (rm & -rm).bit_length() - 1 if rm else 0
    if rm:
        e("    v_lshl_add_u32 v18, v4, 3, s58")
        e(f"    s_add_u32 s58, s58, {STR*NR}")
        e(f"    s_lshr_b32 s36, s33, {3 - lo}")
        e("    s_xor_b32 s36, s36, s2")
        e(f"    s_and_b32 s36, s36, {rm}")
        e(f"    s_cmp_lt_u32 s33, {K0}")
        e("    s_cselect_b32 s36, 0, s36")
        e("    s_lshl_b32 s36, s36, 3")
        e("    s_or_b32 s36, s36, s2")
        e(f"    s_cmp_ge_u32 s36, {NR}")
    else:
        e(f"    s_cmp_ge_u32 s2, {NR}")
    e("    s_cbranch_scc1 L_nowrite")
    e("    v_mov_b32 v16, s44")
    e("    v_mov_b32 v17, s44")
    if not rm:
        e("    v_lshl_add_u32 v18, v4, 3, s58")
    e(f"    global_store_dwordx2 v18, v[16:17], s[{PW}:{PW+1}] {wfl.replace('+', ' ')}")
    for k in range(dup):
        e(f"    v_add_u32 v18, {(2<<20) + 256}, v18")
        e(f"    global_store_dwordx2 v18, v[16:17], s[{PW}:{PW+1}] {wfl.replace('+', ' ')}")
    if not rm:
        e(f"    s_add_u32 s58, s58, {STR*NR}")
    e("L_nowrite:")
    e(f"    s_cmp_eq_u32 s33, {est or M}")
    e("    s_cbranch_scc1 L_next" if est else "    s_cbranch_scc1 L_noread")
    if rm:
        e(f"    s_sub_u32 s36, s33, {M}")
        e(f"    s_cmp_lt_u32 s36, {K0}")
        e(f"    s_cselect_b32 s37, 0, {rm}")
        e(f"    s_lshr_b32 s36, s36, {3 - lo}")
        e("    v_xor_b32 v13, s36, v0")
        e("    v_and_b32 v13, s37, v13")
        e("    v_xor_b32 v14, v13, v0")
        e("    v_and_b32 v14, 7, v14")
        e("    v_and_b32 v13, 7, v0")
        e("    v_sub_u32 v13, v14, v13")
        e(f"    v_mul_i32_i24 v13, {STR}, v13")
        e("    v_add_u32 v13, v13, v9")
        e(f"    global_load_dword v12, v13, s[{PW}:{PW+1}] {rfl.replace('+', ' ')}")
    else:
        e(f"    global_load_dword v12, v9, s[{PW}:{PW+1}] {rfl.replace('+', ' ')}")
    if not est:
        e("L_noread:")
    e(f"    v_add_u32 v9, {STR*NR}, v9")
    e("L_next:")
    if tlb:
        e(f"    s_cmp_lg_u32 s33, {tlb}")
        e("    s_cbranch_scc1 L_notouch")
        e(f"    global_load_dword v21, v20, s[{PV}:{PV+1}] nt")
        e("L_notouch:")
    e(f"    s_add_u32 s31, s31, {9*SUB}")
    e(f"    s_add_u32 s33, s33, {SUB}")
    e("    s_cmp_lt_u32 s33, 252")
    e("    s_cbranch_scc1 L_step")
    e("    s_endpgm")
    VA = 8
    VT = 14
    VE = 20
    VB = 24
    VACC = 40
    VP = 66
    VO = 72
    VX = 76
    VS = 92
    NV = 124
    e("; ==================================================== consumers")
    e("L_consumer:")
    if not qearly:
        qsetup()
        qload()
    e("    v_and_b32 v0, 63, v0")
    e(f"    s_add_u32 s29, s30, {QL}")
    e(f"    v_lshl_add_u32 v{VQ+8}, v13, 7, s29")
    e(f"    v_lshl_add_u32 v{VQ+8}, v5, 3, v{VQ+8}")
    e("    s_lshr_b32 s3, s3, 7")
    e("    s_lshl_b32 s29, s3, 7")
    e("    v_lshl_add_u32 v19, v13, 8, s29")
    e("    v_lshrrev_b32 v13, 3, v4")
    e("    v_lshl_add_u32 v19, v13, 6, v19")
    e("    v_and_b32 v13, 1, v5")
    e("    v_lshl_add_u32 v19, v13, 5, v19")
    e("    v_lshrrev_b32 v6, 1, v5")
    e("    v_lshl_add_u32 v19, v6, 4, v19")
    e("    v_cmp_lt_u32 vcc, 7, v4")
    e("    v_bfe_u32 v6, v0, 2, 2")
    e("    v_lshl_add_u32 v12, v5, 3, v6")
    e("    v_lshl_add_u32 v6, v13, 2, v6")
    e("    s_lshl_b32 s29, s3, 2")
    e("    v_xor_b32 v6, s29, v6")
    e("    v_lshlrev_b32 v6, 5, v6")
    e("    v_lshl_add_u32 v6, v12, 8, v6")
    e("    v_and_b32 v13, 3, v0")
    e(f"    v_lshl_add_u32 v{VA}, v13, 3, v6")
    for j in range(1, 4):
        e(f"    v_xor_b32 v{VA+j}, {32*j}, v{VA}")
    e("    v_lshrrev_b32 v13, 2, v4")
    e("    v_and_b32 v13, 2, v13")
    e("    v_xor_b32 v13, v13, v5")
    e("    v_lshl_add_u32 v13, v4, 2, v13")
    e(f"    v_lshlrev_b32 v{VA+4}, 4, v13")
    e(f"    v_add_u32 v{VA+4}, 8192, v{VA+4}")
    e("    v_add_u32 v3, s29, v7")
    e("    v_xor_b32 v2, 4, v3")
    e(f"    s_add_u32 s16, s{PO}, s27")
    e(f"    s_addc_u32 s17, s{PO+1}, 0")
    e("    s_add_u32 s20, s16, 2048")
    e("    s_addc_u32 s21, s17, 0")
    e("    s_movk_i32 s18, 2048")
    e("    s_movk_i32 s22, 2048")
    e("    s_mov_b32 s31, 0")
    e("    s_mov_b32 s32, 9")
    e("    s_mov_b32 s33, 0")
    e("    s_mov_b32 s34, 0")
    e("    s_branch L_headk")
    e("L_fold:")
    e("    s_cmp_eq_u32 s28, 60")
    e("    s_nop 3")
    for i in range(16):
        t = VX + 2 * (i & 3)
        e(f"    v_cvt_f64_f32 v[{t}:{t+1}], v{VACC+i}")
        e(f"    v_mov_b32 v{VACC+i}, 0")
        e(f"    v_add_f64 v[{VS+2*i}:{VS+2*i+1}], v[{VS+2*i}:{VS+2*i+1}], v[{t}:{t+1}]")
    e("    s_cbranch_scc0 L_folded")
    for i in range(16):
        e(f"    v_cvt_f32_f64 v{VACC+i}, v[{VS+2*i}:{VS+2*i+1}]")
    e("L_folded:")
    if probe:
        e(f"    s_cmp_lg_u32 s31, {probe}")
        e("    s_cbranch_scc1 L_nopr")
        e("    s_memrealtime s[48:49]")
        e("    s_waitcnt lgkmcnt(0)")
        e("L_nopr:")
    e("    s_bitcmp0_b32 s31, 7")
    e("    s_cbranch_scc1 L_k")
    e(f"    s_cmp_lg_u32 s31, {late}")
    e("    s_cbranch_scc1 L_v")
    e(f"    buffer_store_dwordx4 v[{VO}:{VO+3}], v19, s[16:19], 0 offen")
    e("    s_branch L_v")

    def seg(tag, isK):
        for i in range(8):
            e(f"    v_mov_b64 v[{VACC+2*i}:{VACC+2*i+1}], 0")
        for i in range(16):
            e(f"    v_mov_b64 v[{VS+2*i}:{VS+2*i+1}], 0")
        e(f"L_{tag}:")
        for j in range(5):
            e(f"    v_add_u32 v{VT+j}, s34, v{VA+j}")
        e("    s_add_u32 s31, s31, 1")
        e("    v_mov_b32 v13, s31")
        e("    s_cmp_ge_u32 s33, s32")
        e(f"    s_cbranch_scc1 L_{tag}_go")
        if not isK:
            e("    s_cmp_lg_u32 s31, 256")
            e(f"    s_cbranch_scc1 L_{tag}_poll")
            e("    s_barrier")
            e(f"    s_branch L_{tag}_go")
        e(f"L_{tag}_poll:")
        e("    ds_read_b32 v6, v7")
        e("    s_waitcnt lgkmcnt(0)")
        e("    v_readfirstlane_b32 s33, v6")
        decode(33)
        e("    s_cmp_lt_u32 s33, s32")
        e(f"    s_cbranch_scc1 L_{tag}_poll")
        e(f"L_{tag}_go:")
        if slowc:
            if slowone:
                e(f"    s_cmp_eq_u32 s3, {slowone - 1}")
                e(f"    s_cbranch_scc0 L_{tag}_ns")
            e(f"    s_sleep {slowc}")
            e(f"L_{tag}_ns:")
        e(f"    ds_read_b128 v[{VE}:{VE+3}], v{VT+4}")
        for j in range(4):
            e(f"    ds_read_b64_tr_b16 v[{VB+4*j}:{VB+4*j+1}], v{VT+j}")
            e(f"    ds_read_b64_tr_b16 v[{VB+4*j+2}:{VB+4*j+3}], v{VT+j} offset:1024")
        e("    ds_write_b32 v3, v13 offset:16")
        e("    s_add_u32 s32, s32, 9")
        e(f"    s_add_u32 s34, s34, {SLOT}")
        e(f"    s_cmp_eq_u32 s34, {SLOT*S}")
        e("    s_cselect_b32 s34, 0, s34")
        e("    s_and_b32 s28, s31, 3")
        for j in range(4):
            e(f"    s_waitcnt lgkmcnt({7-2*j})")
            a = VACC + 4 * j
            t = VB + 4 * j
            if isK:
                e(f"    v_mfma_f32_16x16x32_bf16 v[{a}:{a+3}], v[{t}:{t+3}], v[{VE}:{VE+3}], v[{a}:{a+3}]")
            else:
                e(f"    v_mfma_f32_16x16x32_bf16 v[{a}:{a+3}], v[{VE}:{VE+3}], v[{t}:{t+3}], v[{a}:{a+3}]")
        e(f"    s_cbranch_scc1 L_{tag}")
        e("    s_and_b32 s28, s31, 63")
        e("    s_cbranch_scc1 L_fold")

    e("L_headk:")
    seg("k", True)
    T = VX
    e("    s_waitcnt vmcnt(0)")
    for j in range(4):
        e(f"    ds_read_b64 v[{VQ+2*j}:{VQ+2*j+1}], v{VQ+8} offset:{32*j}")
    e(f"    v_add_u32 v{VQ+8}, 1024, v{VQ+8}")
    for j in range(4):
        e(f"    v_cvt_pk_bf16_f32 v{T+2*j}, v{VACC+4*j}, v{VACC+4*j+1}")
        e(f"    v_cvt_pk_bf16_f32 v{T+2*j+1}, v{VACC+4*j+2}, v{VACC+4*j+3}")
    e("    s_lshl_b32 s28, s3, 10")
    e(f"    s_add_u32 s28, s28, {SCX - 8192}")
    e("    s_waitcnt lgkmcnt(0)")
    e(f"    v_mfma_f32_16x16x32_bf16 v[{T+8}:{T+11}], v[{T}:{T+3}], v[{VQ}:{VQ+3}], 0")
    e(f"    v_mfma_f32_16x16x32_bf16 v[{T+8}:{T+11}], v[{T+4}:{T+7}], v[{VQ+4}:{VQ+7}], v[{T+8}:{T+11}]")
    e(f"    v_add_u32 v14, s28, v{VA+4}")
    e("    v_xor_b32 v15, 16, v0")
    e("    v_xor_b32 v16, 32, v0")
    e("    v_lshlrev_b32 v15, 2, v15")
    e("    v_lshlrev_b32 v16, 2, v16")
    e("    s_xor_b32 s29, s3, 1")
    e("    s_lshl_b32 s29, s29, 10")
    e(f"    s_add_u32 s29, s29, {SCX - 8192}")
    e(f"    v_add_u32 v17, s29, v{VA+4}")
    e(f"    ds_write_b128 v14, v[{T+8}:{T+11}]")
    e("    ds_write_b32 v3, v13 offset:32")
    e("L_scpoll:")
    e("    ds_read_b32 v6, v2 offset:32")
    e("    s_waitcnt lgkmcnt(0)")
    e("    v_readfirstlane_b32 s28, v6")
    e("    s_cmp_lt_u32 s28, s31")
    e("    s_cbranch_scc1 L_scpoll")
    e(f"    ds_read_b128 v[{T}:{T+3}], v17")
    e("    s_waitcnt lgkmcnt(0)")
    for i in range(4):
        e(f"    v_add_f32 v{T+i}, v{T+i}, v{T+8+i}")

    def rnd():
        e(f"    v_cvt_pk_bf16_f32 v{T+4}, v{T}, v{T+1}")
        e(f"    v_cvt_pk_bf16_f32 v{T+5}, v{T+2}, v{T+3}")
        e(f"    v_lshlrev_b32 v{T}, 16, v{T+4}")
        e(f"    v_and_b32 v{T+1}, 0xffff0000, v{T+4}")
        e(f"    v_lshlrev_b32 v{T+2}, 16, v{T+5}")
        e(f"    v_and_b32 v{T+3}, 0xffff0000, v{T+5}")
    rnd()
    for i in range(4):
        e(f"    v_mul_f32 v{T+i}, 0x3db504f3, v{T+i}         ; 128^-0.5")
    rnd()
    e(f"    v_max_f32 v{T+4}, v{T}, v{T+1}")
    e(f"    v_max3_f32 v{T+4}, v{T+2}, v{T+3}, v{T+4}")
    e(f"    ds_bpermute_b32 v{T+5}, v15, v{T+4}")
    e("    s_waitcnt lgkmcnt(0)")
    e(f"    v_max_f32 v{T+4}, v{T+4}, v{T+5}")
    e(f"    ds_bpermute_b32 v{T+5}, v16, v{T+4}")
    e("    s_waitcnt lgkmcnt(0)")
    e(f"    v_max_f32 v{T+4}, v{T+4}, v{T+5}")
    for i in range(4):
        e(f"    v_sub_f32 v{T+i}, v{T+i}, v{T+4}")
    for i in range(4):
        e(f"    v_mul_f32 v{T+i}, 0x3fb8aa3b, v{T+i}         ; log2(e)")
    for i in range(4):
        e(f"    v_exp_f32 v{T+i}, v{T+i}")
    e("    s_nop 0")
    e(f"    v_add_f32 v{T+4}, v{T}, v{T+1}")
    e(f"    v_add_f32 v{T+5}, v{T+2}, v{T+3}")
    e(f"    v_add_f32 v{T+4}, v{T+4}, v{T+5}")
    e(f"    ds_bpermute_b32 v{T+5}, v15, v{T+4}")
    e("    s_waitcnt lgkmcnt(0)")
    e(f"    v_add_f32 v{T+4}, v{T+4}, v{T+5}")
    e(f"    ds_bpermute_b32 v{T+5}, v16, v{T+4}")
    e("    s_waitcnt lgkmcnt(0)")
    e(f"    v_add_f32 v{T+4}, v{T+4}, v{T+5}")
    e(f"    v_rcp_f32 v{T+4}, v{T+4}")
    e(f"    v_mov_b64 v[{VP}:{VP+1}], v[{VP+2}:{VP+3}]")
    for i in range(4):
        e(f"    v_mul_f32 v{T+i}, v{T+i}, v{T+4}")
    e(f"    v_cvt_pk_bf16_f32 v{VP+2}, v{T}, v{T+1}")
    e(f"    v_cvt_pk_bf16_f32 v{VP+3}, v{T+2}, v{T+3}")
    e("    s_cmp_eq_u32 s31, 64")
    e("    s_cbranch_scc1 L_headk")
    e("L_headv:")
    seg("v", False)
    e("    s_cmp_eq_u32 s31, 256")
    for j in range(4):
        e(f"    v_cvt_pk_bf16_f32 v{VB+2*j}, v{VACC+4*j}, v{VACC+4*j+1}")
        e(f"    v_cvt_pk_bf16_f32 v{VB+2*j+1}, v{VACC+4*j+2}, v{VACC+4*j+3}")
    for j in range(4):
        e(f"    v_mfma_f32_16x16x16_bf16 v[{T+4*j}:{T+4*j+3}], v[{VB+2*j}:{VB+2*j+1}], v[{VP}:{VP+1}], 0")
    e("    s_nop 6")
    for i in range(8):
        e(f"    v_cndmask_b32 v{T+i}, v{T+i}, v{T+8+i}, vcc")
    for j in range(2):
        e(f"    v_cvt_pk_bf16_f32 v{VO+2*j}, v{T+4*j}, v{T+4*j+1}")
    for j in range(2):
        e(f"    v_cvt_pk_bf16_f32 v{VO+2*j+1}, v{T+4*j+2}, v{T+4*j+3}")
    e(f"    v_permlane16_swap_b32 v{VO}, v{VO+2}")
    e(f"    v_mov_b64 v[{VP}:{VP+1}], v[{VP+2}:{VP+3}]")
    e(f"    v_permlane16_swap_b32 v{VO+1}, v{VO+3}")
    e("    s_cbranch_scc0 L_headv")
    e(f"    buffer_store_dwordx4 v[{VO}:{VO+3}], v19, s[20:23], 0 offen")
    if bp:
        probe = 1
        e("    ds_read_b32 v6, v7 offset:40")
        e("    s_waitcnt lgkmcnt(0)")
        e("    v_readfirstlane_b32 s48, v6")
    if spin:
        if only >= 0:
            e(f"    s_cmp_lg_u32 s2, {only}")
            e("    s_cbranch_scc1 L_done")
        e("    s_waitcnt vmcnt(0)")
        e("    s_memrealtime s[62:63]")
        e("    s_waitcnt lgkmcnt(0)")
        e("    s_sub_u32 s46, s62, s60" if not probe else "    s_sub_u32 s46, s48, s60")
        e(f"    s_mul_i32 s46, s46, {spin}")
        if probe:
            e("    s_add_u32 s46, s46, 10000")
        e("    s_min_u32 s46, s46, 200000")
        e("L_spin:")
        e("    s_memrealtime s[62:63]")
        e("    s_waitcnt lgkmcnt(0)")
        e("    s_sub_u32 s47, s62, s60")
        e("    s_cmp_lt_u32 s47, s46")
        e("    s_cbranch_scc1 L_spin")
    if stamp:
        if stamp == 2:
            e("    s_waitcnt vmcnt(0)")
        e("    s_memrealtime s[62:63]")
        e("    s_lshl_b32 s47, s2, 1")
        e("    s_add_u32 s46, s3, s47")
        e("    s_lshl_b32 s46, s46, 4")
        e("    s_waitcnt vmcnt(0) lgkmcnt(0)")
        e("    s_getreg_b32 s61, hwreg(HW_REG_XCC_ID)")
        e("    v_mov_b32 v12, s60")
        e("    v_mov_b32 v13, s61")
        e("    v_mov_b32 v14, s62" if not probe else "    v_mov_b32 v14, s48")
        e("    v_mov_b32 v15, 0")
        e("    v_mov_b32 v16, s46")
        e(f"    global_store_dwordx4 v16, v[12:15], s[{PW}:{PW+1}]")
    e("L_done:")
    e("    s_endpgm")
    e('.section .rodata,"a"')
    e(".p2align 6")
    e(f".amdhsa_kernel {NAME}_kernel")
    e(f"  .amdhsa_next_free_vgpr {NV}")
    e("  .amdhsa_next_free_sgpr 80")
    e(f"  .amdhsa_accum_offset {(NV+3)//4*4}")
    e("  .amdhsa_group_segment_fixed_size 0")
    e("  .amdhsa_kernarg_size 64")
    e("  .amdhsa_user_sgpr_count 2")
    e("  .amdhsa_user_sgpr_kernarg_segment_ptr 1")
    e("  .amdhsa_system_sgpr_workgroup_id_x 1")
    e("  .amdhsa_float_denorm_mode_32 3")
    e(".end_amdhsa_kernel")
    return "\n".join(L) + "\n"


if __name__ == "__main__":
    import sys
    kw = {}
    out = "/dev/stdout"
    for a in sys.argv[1:]:
        k, v = a.split("=")
        if k == "o":
            out = v
            continue
        try:
            v = int(v)
        except ValueError:
            pass
        kw[k] = v
    open(out, "w").write(gen(**kw))
```
